```python
import torch

def _softmax(x, axis=-1):
    return torch.softmax(x, dim=axis)

def _gelu(x):
    return torch.nn.functional.gelu(x, approximate='tanh')

def _silu(x):
    return torch.nn.functional.silu(x)

def _sigmoid(x):
    return torch.sigmoid(x)

def _layernorm(x, axis=-1, eps=1e-05):
    m = x.mean(dim=axis, keepdim=True)
    v = x.var(dim=axis, keepdim=True, unbiased=False)
    return (x - m) / torch.sqrt(v + eps)

def _scatter_add(tgt, idx, src, axis=0):
    return tgt.clone().index_add_(axis, idx, src)

def _segment_sum(src, seg, n):
    out = torch.zeros((n,) + src.shape[1:], dtype=src.dtype)
    return out.index_add_(0, seg, src)

def _pad(x, pw):
    flat = tuple((v for pair in reversed(pw) for v in pair))
    return torch.nn.functional.pad(x, flat)
kernel_name = 'adaLN_cond__mha_block_cached__glu_gated_geglu__prompt'

def setup_inputs():

    _w = lambda a: (lambda t: t.to(torch.bfloat16) if t.is_floating_point() else t)(torch.as_tensor(a))

    def _A_setup():
        B, Sq, D = (1, 2048, 448)
        H, Sk, Dh = (16, 2048, 256)
        return {'x': _w((lambda *s: torch.randn(*s, dtype=torch.bfloat16) * 0.05)(B, Sq, D)), 'k_cache': _w((lambda *s: torch.randn(*s, dtype=torch.bfloat16) * 0.8)(B, H, Sk, Dh)), 'v_cache': _w((lambda *s: torch.randn(*s, dtype=torch.bfloat16) * 3.2)(B, H, Sk, Dh)), 'wq': _w((lambda *s: torch.randn(*s, dtype=torch.bfloat16) * 0.8)(D, H * Dh) * D ** (-0.5)), 'wo': _w((lambda *s: torch.randn(*s, dtype=torch.bfloat16) * 3.2)(H * Dh, D) * (H * Dh) ** (-0.5))}
    _A_in = _A_setup()

    def _B_setup():
        B, S, Dm, Df = (1, 2048, 448, 1792)
        return {'x': _w((lambda *s: torch.randn(*s, dtype=torch.bfloat16) * 0.05)(B, S, Dm)), 'w_gate': _w((lambda *s: torch.randn(*s, dtype=torch.bfloat16) * 3.2)(Dm, Df) * Dm ** (-0.5)), 'w_up': _w((lambda *s: torch.randn(*s, dtype=torch.bfloat16) * 3.2)(Dm, Df) * Dm ** (-0.5)), 'w_down': _w((lambda *s: torch.randn(*s, dtype=torch.bfloat16) * 3.2)(Df, Dm) * Df ** (-0.5))}
    _B_in = _B_setup()
    return {'A_x': _A_in['x'], 'A_k_cache': _A_in['k_cache'], 'A_v_cache': _A_in['v_cache'], 'A_wq': _A_in['wq'], 'A_wo': _A_in['wo'], 'B_x': _B_in['x'], 'B_w_gate': _B_in['w_gate'], 'B_w_up': _B_in['w_up'], 'B_w_down': _B_in['w_down'], 'c': _w((lambda *s: torch.randn(*s, dtype=torch.bfloat16) * 0.4)(1, 448) * 8.0), 'w_mod': _w((lambda *s: torch.randn(*s, dtype=torch.bfloat16) * 0.4)(448, 6 * 448) * 448 ** (-0.5) * 8.0)}

def reference(A_x, A_k_cache, A_v_cache, A_wq, A_wo, B_x, B_w_gate, B_w_up, B_w_down, c, w_mod):

    def _A_ref(x, k_cache, v_cache, wq, wo):
        B, Sq, D = x.shape
        H, Dh = (16, 256)
        q = (lambda x, *d: x.permute(*d))((x @ wq).reshape(B, Sq, H, Dh), 0, 2, 1, 3)
        scores = torch.einsum('bhqd,bhkd->bhqk', q, k_cache) * Dh ** (-0.5)
        p = _softmax(scores, axis=-1)
        o = torch.einsum('bhqk,bhkd->bhqd', p, v_cache)
        return (lambda x, *d: x.permute(*d))(o, 0, 2, 1, 3).reshape(B, Sq, H * Dh) @ wo

    def _B_ref(x, w_gate, w_up, w_down):
        g = torch.einsum('bsd,df->bsf', x, w_gate)
        u = torch.einsum('bsd,df->bsf', x, w_up)
        h = _gelu(g) * u
        return torch.einsum('bsf,fd->bsd', h, w_down)
    x = A_x
    mod = (_silu(c) @ w_mod).reshape(c.shape[0], 6, 1, -1)
    sa, ca, ga, sb, cb, gb = (mod[:, 0].clone(), mod[:, 1].clone(), mod[:, 2].clone(), mod[:, 3].clone(), mod[:, 4].clone(), mod[:, 5].clone())
    h = _layernorm(x, axis=-1) * (1 + ca) + sa
    x = x + ga * _A_ref(h, A_k_cache, A_v_cache, A_wq, A_wo)
    h = _layernorm(x, axis=-1) * (1 + cb) + sb
    x = x + gb * _B_ref(h, B_w_gate, B_w_up, B_w_down)
    return x
```

```python
import re

def vr(a, n=1, p='v'):
    return f"{p}{a}" if n == 1 else f"{p}[{a}:{a+n-1}]"
def ar(a, n=1): return vr(a, n, 'a')
def sr(a, n=1): return vr(a, n, 's')

_REG = re.compile(r'^(-|abs\()?([vas])(?:(\d+)|\[(\d+):(\d+)\])\)?$')
def regs_of(tok):
    tok = tok.strip()
    m = _REG.match(tok)
    if m:
        p = m.group(2)
        if m.group(3) is not None: return [(p, int(m.group(3)))]
        return [(p, i) for i in range(int(m.group(4)), int(m.group(5)) + 1)]
    if tok == 'vcc': return [('s', 'vcc')]
    if tok == 'm0': return [('s', 'm0')]
    if tok == 'exec': return [('s', 'exec')]
    return []

TRANS = ('v_exp_f32', 'v_log_f32', 'v_rcp_f32', 'v_rsq_f32', 'v_sqrt_f32', 'v_sin_f32', 'v_cos_f32')

class Ins:
    def __init__(self, text):
        self.text = text
        t = text.split(';')[0].strip()
        self.label = t.endswith(':')
        self.dirv = t.startswith('.') and not self.label
        self.empty = (t == '')
        self.op = '' if (self.label or self.empty) else t.split()[0]
        rest = t[len(self.op):].strip() if self.op else ''
        ops = [o.strip() for o in rest.split(',')] if rest else []
        if ops:
            last = ops[-1].split()
            self.mods = ' '.join(last[1:]) if len(last) > 1 else ''
            clean = []
            for o in ops:
                clean.append(o.split()[0] if o.split() else o)
            ops = clean
        else:
            self.mods = ''
        self.full = t
        self.ops = ops
        op = self.op
        self.w = []; self.r = []
        self.kind = 'other'
        R = lambda i: regs_of(ops[i]) if i < len(ops) else []
        if op.startswith('v_mfma'):
            self.kind = 'mfma'; self.w = R(0); self.A = R(1); self.B = R(2); self.C = R(3); self.r = self.A + self.B + self.C
            self.passes = 8 if '32x32x16' in op else 4
        elif op.startswith('v_cmp'):
            self.kind = 'valu'; self.w = R(0); self.r = R(1) + R(2)
        elif op.startswith('v_readfirstlane') or op.startswith('v_readlane'):
            self.kind = 'valu'; self.w = R(0); self.r = R(1) + R(2)
        elif op.startswith('v_permlane'):
            self.kind = 'valu'; self.w = R(0) + R(1); self.r = R(0) + R(1)
        elif op.startswith('v_add_co') or op.startswith('v_sub_co') or op.startswith('v_addc_co'):
            self.kind = 'valu'; self.w = R(0) + R(1); self.r = R(2) + R(3) + R(4)
        elif op.startswith('v_'):
            self.kind = 'valu'; self.w = R(0)
            self.r = [x for i in range(1, len(ops)) for x in R(i)]
            if op.startswith('v_fmac') or op.startswith('v_dot2c') or 'dpp' in op or 'mixlo' in op or 'mixhi' in op or op.startswith('v_writelane'): self.r += R(0)
            if op.startswith('v_cndmask') and len(ops) == 3: self.r += [('s', 'vcc')]
        elif op.startswith('ds_read') or op.startswith('ds_bpermute') or op.startswith('ds_swizzle'):
            self.kind = 'ds'; self.w = R(0); self.r = [x for i in range(1, len(ops)) for x in R(i)]
        elif op.startswith('ds_'):
            self.kind = 'ds'; self.r = [x for i in range(len(ops)) for x in R(i)]
        elif op.startswith('buffer_load') or op.startswith('global_load'):
            self.kind = 'vmem'
            if ' lds' in (' ' + t.split(',')[-1] + ' ') or t.rstrip().endswith('lds'):
                self.dma = True
                self.r = [x for i in range(len(ops)) for x in R(i)] + [('s', 'm0')]
            else:
                self.w = R(0); self.r = [x for i in range(1, len(ops)) for x in R(i)]
        elif op.startswith('buffer_store') or op.startswith('buffer_atomic'):
            self.kind = 'vmem'; self.r = [x for i in range(len(ops)) for x in R(i)]
            self.store_data = R(0) if ('x4' in op or 'x3' in op) else []
            if op.startswith('buffer_atomic') and 'sc0' in t: self.w = R(0)
        elif op.startswith('s_nop'):
            self.kind = 'nop'; self.n = int(ops[0], 0) + 1
        elif op.startswith('s_cmp') or op.startswith('s_cbranch') or op.startswith('s_branch') or op in ('s_waitcnt', 's_barrier', 's_endpgm', 's_setprio', 's_sleep'):
            self.kind = 'salu'; self.r = [x for i in range(len(ops)) for x in R(i)]
        elif op.startswith('s_'):
            self.kind = 'salu'; self.w = R(0); self.r = [x for i in range(1, len(ops)) for x in R(i)]
            if 'saveexec' in op: self.w += [('s', 'exec')]
        self.ws = set(self.w); self.rs = set(self.r)
        self.trans = any(op.startswith(x) for x in TRANS)
        self.dpp = ('dpp' in op) or ('row_' in t) or ('quad_perm' in t)

def check_hazards(lines, name=''):
    ins = []
    for ln in lines:
        i = Ins(ln)
        if i.label or i.dirv or i.empty: continue
        ins.append(i)
    errs = []
    N = len(ins)
    for k, a in enumerate(ins):
        dist = 0
        for j in range(k + 1, min(N, k + 24)):
            b = ins[j]
            need = 0; why = ''
            def upd(n, w):
                nonlocal need, why
                if n > need: need = n; why = w
            if a.kind == 'valu':
                vw = {x for x in a.ws if x[0] in 'va'}
                sw = {x for x in a.ws if x[0] == 's'}
                if b.kind == 'mfma' and vw & b.rs: upd(2, 'valu->mfma')
                if a.trans and b.kind == 'valu' and not b.trans and vw & b.rs: upd(1, 'trans->valu')
                if a.trans and b.kind in('vmem','ds') and vw & b.rs: upd(1, 'trans->mem')
                if b.op.startswith('v_permlane') and vw & b.rs: upd(2, 'valu->permlane')
                if b.kind == 'valu' and b.dpp and vw & b.rs: upd(2, 'valu->dpp')
                if (b.op.startswith('v_readfirstlane') or b.op.startswith('v_readlane')) and vw & b.rs: upd(1, 'valu->readlane')
                if b.kind == 'vmem' and sw & b.rs: upd(5, 'valu sgpr->vmem')
                if b.kind == 'valu' and sw & b.rs: upd(2, 'valu sgpr->valu')
                if b.kind == 'salu' and sw & (b.rs | ({('s','vcc')} if 'vcc' in b.op else set())): upd(1, 'valu sgpr->salu(soft)')
                if a.op.startswith('v_dot'):
                    if b.op == a.op:
                        srcs = set(x for i in range(1, 3) if i < len(b.ops) for x in regs_of(b.ops[i]))
                        if vw & srcs: upd(3, 'dot->dot AB')
                    elif vw & (b.rs | b.ws): upd(3, 'dot->other')
                if ('mixhi' in a.op or 'mixlo' in a.op or 'sdwa' in a.op) and b.kind == 'valu' and vw & (b.rs | b.ws): upd(1, 'mix/sdwa')
                if ('op_sel' in a.full and 'mix' not in a.op and not a.op.startswith('v_pk')) and b.kind == 'valu' and vw & b.rs: upd(1, 'opsel')
            if a.kind == 'mfma':
                P = a.passes
                if b.kind == 'mfma':
                    if a.ws & (set(b.A) | set(b.B)): upd({4: 8, 8: 12}[P], 'mfma D->AB')
                    if a.ws & set(b.C) and (a.w != b.C or a.passes != b.passes): upd({4: 6, 8: 10}[P], 'mfma D->C overlap')
                    if a.ws & b.ws and not (a.w == b.C): upd({4: 6, 8: 10}[P], 'mfma D->D waw(conservative)')
                elif b.kind in ('valu', 'vmem', 'ds'):
                    if a.ws & (b.rs | b.ws): upd({4: 8, 8: 12}[P], 'mfma D->other')
                    if b.kind == 'valu' and set(a.C) & b.ws: upd({4: 3, 8: 7}[P], 'mfma C WAR')
            if a.kind == 'salu' and ('s', 'm0') in a.ws and getattr(b, 'dma', False): upd(1, 'm0->dma')
            if a.kind == 'vmem' and getattr(a, 'store_data', None):
                if set(a.store_data) & b.ws: upd(2 if b.kind == 'valu' else 1, 'store data WAR')
            if need > dist:
                errs.append(f"{name}: hazard {why}: need {need} have {dist}:\n    {a.full}\n    {b.full}")
            dist += b.n if b.kind == 'nop' else 1
            if dist >= 20: break
    return errs

KD = """.section .rodata,"a"
.p2align 6
.amdhsa_kernel {name}
  .amdhsa_next_free_vgpr {vgpr}
  .amdhsa_next_free_sgpr {sgpr}
  .amdhsa_accum_offset {acc}
  .amdhsa_group_segment_fixed_size 0
  .amdhsa_kernarg_size 112
  .amdhsa_user_sgpr_count 2
  .amdhsa_user_sgpr_kernarg_segment_ptr 1
  .amdhsa_system_sgpr_workgroup_id_x 1
  .amdhsa_float_denorm_mode_32 3
.end_amdhsa_kernel
"""
def kernel_text(name, body):
    return f".text\n.globl {name}\n.p2align 8\n.type {name},@function\n{name}:\n" + "\n".join(body) + "\n"

class Item:
    __slots__ = ('text', 'lds_tag', 'vm_tag', 'need_lds', 'need_vm', 'cost')
    def __init__(self, text, lds_tag=None, vm_tag=None, need_lds=(), need_vm=(), cost=1):
        self.text = text; self.lds_tag = lds_tag; self.vm_tag = vm_tag
        self.need_lds = need_lds; self.need_vm = need_vm; self.cost = cost

class Emitter:
    def __init__(self):
        self.out = []
        self.lds = []
        self.lds_done = 0
        self.vm = []
        self.vm_done = 0
        self.time = 0
    def raw(self, s): self.out += [x for x in s.split('\n')]
    def last_idx(self, lst, tags):
        idx = -1
        for t in tags:
            f = [i for i, (tg, _) in enumerate(lst) if tg == t]
            assert f, f"tag {t} never issued"
            idx = max(idx, f[-1])
        return idx
    def wait_lds(self, tags, minage=None):
        idx = self.last_idx(self.lds, tags)
        if idx < self.lds_done: return
        if minage is not None:
            j = idx
            while j + 1 < len(self.lds) and self.lds[j + 1][1] <= self.time - minage: j += 1
            idx = j
        n = min(len(self.lds) - 1 - idx, 15)
        self.out.append(f"s_waitcnt lgkmcnt({n})")
        self.lds_done = len(self.lds) - n
    def wait_vm(self, tags):
        idx = self.last_idx(self.vm, tags)
        if idx < self.vm_done: return
        n = min(len(self.vm) - 1 - idx, 63)
        self.out.append(f"s_waitcnt vmcnt({n})")
        self.vm_done = len(self.vm) - n
    def wait_both(self, vm_tags, lds_all=True):
        parts = []
        if vm_tags:
            idx = self.last_idx(self.vm, vm_tags)
            if idx >= self.vm_done:
                n = min(len(self.vm) - 1 - idx, 63)
                parts.append(f"vmcnt({n})"); self.vm_done = len(self.vm) - n
        if lds_all and self.lds_done < len(self.lds):
            parts.append("lgkmcnt(0)"); self.lds_done = len(self.lds)
        if parts: self.out.append("s_waitcnt " + " ".join(parts))
    def item(self, it, minage=None):
        if isinstance(it, str): it = Item(it)
        if it.need_lds: self.wait_lds(it.need_lds, minage)
        if it.need_vm: self.wait_vm(it.need_vm)
        self.raw(it.text)
        if it.lds_tag is not None: self.lds.append((it.lds_tag, self.time))
        if it.vm_tag is not None: self.vm.append((it.vm_tag, self.time))
```

```python
from asmlib import *
import math, re as _re

WS_MOD  = 0
WS_GA = 4096; WS_B0 = 4096 + 1792; WS_B1 = 4096 + 3584; WS_GB = 4096 + 5376
WS_FLAG = 16384
FRAGB   = 128 * 14 * 1024
WS_H2   = 1 << 20
WS_X1   = WS_H2 + (2 << 20)
WS_HH   = WS_X1 + (4 << 20)
WS_PART = WS_HH + (8 << 20)
WS_END  = WS_PART + 16 * FRAGB
WS_SIZE = 268435456
OOB = 0x40000000

SLOT = [0, 65536, 32768, 98304]
LDS_MOD = 131072
LDS_SCR = 131072 + 4096
LDS_LN  = 131072 + 29184
LDS_TOT = 163840

vK = 1; vV = 5; vDK = 13; vDV = 21; vL = 29; vPS = 31; vTM = 33; vSTMP = 39; vT = 40; vNEG = 48; vGU = 56; vFst = 63; vQ = 64
vS = [128, 160]; vP = [192, 208]
vHB = 32; vMV = 64; vFT = 100; vDW = 108; vMod = 112; vX = 113; vWlo = 120; vXN = 128; vWhi = 240; vQT = 40
vOB = 64; vOA = [128, 160]; vST = [192, 208]; vWoA = 224; vDWo = 232; vL16 = 233; vRL = 236; vOT = 240
aO = 0; aQA = 0; aF = 128
sK = 4; sV = 8; sWq = 12; sWo = 16; sWS = 20; sW8 = 24; sKo = 25; sVo = 26; sCnt = 27; sThr = 28; sTmp = 29; sRet = 30; sPart = 32; sXo = 33
sGUl = 34; sT2 = 35
sX = 36; sDbg = 40; sGU = 44; sWm = 48; sC = 52; sW = 56; sHead = 57; sQb = 58; sA = 59; sB = 60; sD = 61; sE = 62; sF = 63
sDn = 12; sOut = 48
KA = 64

MF = "v_mfma_f32_16x16x32_bf16"
MF32 = "v_mfma_f32_32x32x16_bf16"
THR_LOG2 = 24
G = 64
POLLMAX = 1 << 14
def f2u(x):
    import struct
    return hex(struct.unpack('<I', struct.pack('<f', x))[0])

class Sched:
    def __init__(self, NG, opt):
        self.NG = NG
        self.mf = [None] * NG
        self.need = [()] * NG
        self.needvm = [()] * NG
        self.fixed = [[] for _ in range(NG + 1)]
        self.valu = [[] for _ in range(NG + 1)]
        self.post = [[] for _ in range(NG + 1)]
        self.free_nv = opt.get('free_nv', 0)
    def cost(self, g):
        c = sum((2 if isinstance(x, tuple) else x.cost) for x in self.fixed[g])
        c = max(0, c - self.free_nv)
        return c + sum(x.cost for x in self.valu[g]) + sum(x.cost for x in self.post[g])
    def spread(self, items, g0, g1):
        items = [Item(x) if isinstance(x, str) else x for x in items]
        tot = sum(x.cost for x in items)
        base = [self.cost(g) for g in range(g0, g1 + 1)]
        lo, hi = 0.0, 1000.0
        for _ in range(50):
            m = (lo + hi) / 2
            if sum(max(0, m - b) for b in base) >= tot: hi = m
            else: lo = m
        cum = 0.0; done = 0.0; k = 0
        for g in range(g0, g1 + 1):
            cum += max(0, hi - base[g - g0])
            while k < len(items) and (done + items[k].cost / 2 <= cum + 1e-6 or g == g1):
                self.valu[g].append(items[k]); done += items[k].cost; k += 1
        assert k == len(items)
    def stream(self, groups, cap):
        g = 0
        for e, items in groups:
            g = max(g, min(e, self.NG))
            for it in items:
                it = Item(it) if isinstance(it, str) else it
                while g < self.NG and self.cost(g) + it.cost > cap + (0.5 if it.cost > 1 else 0): g += 1
                self.valu[g].append(it)
    def place_reads(self, g0, reads, first_use, rd_last, dist):
        flat = [(it, first_use[f]) for f, r in enumerate(reads) for it in r]
        n = len(flat)
        pos = [min(g0 + (k * (rd_last + 1)) // n, flat[k][1] - dist) for k in range(n)]
        for k in range(n - 2, -1, -1):
            pos[k] = min(pos[k], pos[k + 1])
            if k + 2 < n and pos[k] == pos[k + 2]: pos[k] -= 1
        for k in range(n):
            self.fixed[max(pos[k], g0)].append(flat[k][0])
    def emit(self, E, G, minage, bar):
        segs = []
        for n in range(self.NG + 1):
            if n % G == 0 and n:
                segs.append(E.out); E.out = []
            E.time = n
            if n < self.NG and self.mf[n] is not None:
                E.wait_lds(self.need[n], minage)
                if self.needvm[n]: E.wait_vm(self.needvm[n])
                E.raw(self.mf[n])
            for it in self.fixed[n]:
                if isinstance(it, tuple):
                    bar(E, it)
                    if len(E.out) >= 2 and E.out[-1].startswith('s_waitcnt vm') and E.out[-2].startswith('s_waitcnt lgkm'):
                        a = E.out.pop(); b = E.out.pop(); E.raw(a + ' ' + b.split()[1])
                    E.raw("s_barrier")
                else:
                    if it.text.endswith('lds') and E.out and ' m0,' in E.out[-1]: E.raw('s_nop 0')
                    E.item(it)
            for it in self.valu[n] + self.post[n]: E.item(it, minage)
        segs.append(E.out); E.out = []
        return segs

def xlane_reduce(op, a, t):
    return [Item(f"v_mov_b32 v{t}, v{a}"), Item("s_nop 1", cost=2), Item(f"v_permlane32_swap_b32 v{a}, v{t}"), Item(f"{op} v{a}, v{a}, v{t}"),
            Item(f"v_mov_b32 v{t}, v{a}"), Item("s_nop 1", cost=2), Item(f"v_permlane16_swap_b32 v{a}, v{t}"), Item(f"{op} v{a}, v{a}, v{t}")]
def xlane_multi(op, regs, tmps):
    r = []
    for sw in ('32', '16'):
        r += [f"v_mov_b32 v{t}, v{a}" for a, t in zip(regs, tmps)] + ["s_nop 1"]
        r += [f"v_permlane{sw}_swap_b32 v{a}, v{t}" for a, t in zip(regs, tmps)]
        r += [f"{op} v{a}, v{a}, v{t}" for a, t in zip(regs, tmps)]
    return r
def srd(d, plo, off, size):
    if off is None: r = [f"s_mov_b32 s{d}, s{plo}", f"s_mov_b32 s{d+1}, s{plo+1}"]
    else: r = [f"s_add_u32 s{d}, s{plo}, {off}", f"s_addc_u32 s{d+1}, s{plo+1}, 0"]
    r.append(size if isinstance(size, str) else f"s_mov_b32 s{d+2}, {size}")
    r.append(f"s_mov_b32 s{d+3}, 0x20000")
    return "\n".join(r)

def gen(opt=None):
    opt = opt or {}
    SH = opt.get('shift', 12)
    RD_LAST = opt.get('rd_last', 55)
    MINAGE = opt.get('minage', 6)
    DIST = opt.get('dist', 10)
    NPRE = opt.get('npre', 4)
    SC = ' sc1'
    NPH = 78
    NG = NPH * G + SH
    S_ = Sched(NG, opt)
    mf = S_.mf; fixed = S_.fixed; valu = S_.valu; post = S_.post; spread = S_.spread
    stamps = opt.get('stamps')
    nst = [0]; streg = [255]
    def stamp_lines():
        if stamps is None: return []
        k = nst[0]; nst[0] += 1
        return ["s_memtime s[96:97]", "s_memrealtime s[98:99]", "s_waitcnt lgkmcnt(0)", f"v_writelane_b32 v{streg[0]}, s96, {2 * k}", f"v_writelane_b32 v{streg[0]}, s98, {2 * k + 1}"]

    def phase_kind(j):
        if j < 7: return ('W', j)
        if j == 7: return ('K', 0)
        if j <= 69: return ('K', (j - 6) // 2) if j % 2 == 0 else ('V', (j - 9) // 2)
        if j == 70: return ('V', 31)
        return ('O', j - 71)
    def slot_of(j):
        if j <= 69: return j % 4
        return {70: 3, 71: 2, 72: 0, 73: 1, 74: 3, 75: 2, 76: 0, 77: 1}[j]
    def dma_seg(j):
        if j < 4: return None
        if j <= 69: return j - 3
        return {70: 68, 71: 67, 72: 69, 73: 70, 74: 71, 75: 72, 76: 73, 77: 74}[j]
    N0 = lambda j: G * j + SH
    dmod = opt.get('dma_mod', '')

    def dma_items(j):
        kind, t = phase_kind(j); sl = SLOT[slot_of(j)]
        its = []
        for q in range(8):
            pre = []
            if q % 4 == 0: pre.append(f"s_add_u32 m0, s{sW8}, {sl + (q // 4) * 4096}")
            imm = (q % 4) * 1024
            off = f" offset:{imm}" if imm else ""
            if kind == 'K':
                ld = f"buffer_load_dwordx4 v{vDK + q}, {sr(sK,4)}, s{sKo} offen{off}{dmod} lds"
            elif kind == 'V':
                ld = f"buffer_load_dwordx4 v{vDV + q}, {sr(sV,4)}, s{sVo} offen{off}{dmod} lds"
            elif kind == 'W':
                pre.append(f"s_mov_b32 s{sTmp}, {(64 * t + 2 * q) * 8192 - imm}")
                ld = f"buffer_load_dwordx4 v{vDW + (q & 1) + 2 * (q >> 2)}, {sr(sWq,4)}, s{sTmp} offen{off} lds"
            else:
                pre.append(f"s_mov_b32 s{sTmp}, {8 * q * 896 + 128 * t - imm}")
                ld = f"buffer_load_dwordx4 v{vDWo}, {sr(sWo,4)}, s{sTmp} offen{off} lds"
            aft = []
            if q == 7 and kind == 'K': aft.append(f"s_add_u32 s{sKo}, s{sKo}, 32768")
            if q == 7 and kind == 'V': aft.append(f"s_add_u32 s{sVo}, s{sVo}, 32768")
            its.append((pre, Item(ld, vm_tag=('tile', j), cost=opt.get('dma_cost', 1)), aft))
        return its
    GU_SLOT = [131072, 98304, 32768, 0, 65536, 131072, 98304]
    def gu_dma(c):
        its = []
        for q in range(7):
            pre = []
            if q == 0: pre.append(f"s_mov_b32 s{sTmp}, {c * 64 * 3584}")
            if q % 4 == 0: pre.append(f"s_add_u32 m0, s{sGUl}, {GU_SLOT[c] + (q // 4) * 4096}")
            imm = (q % 4) * 1024
            off = f" offset:{imm}" if imm else ""
            its.append((pre, Item(f"buffer_load_dwordx4 v{vGU + q}, {sr(sGU,4)}, s{sTmp} offen{off} lds", vm_tag=('gu', c)), []))
        return its

    Qr = lambda s, qh: vQ + 8 * s + 4 * qh
    Sr = lambda b, kb, qh: vS[b] + (2 * kb + qh) * 4
    Pr = lambda b, qh, ks: vP[b] + 8 * qh + 4 * ks
    last_write = {}
    first_read = {}
    for j in range(NPH):
        kind, t = phase_kind(j); sl = SLOT[slot_of(j)]
        if kind in 'WV': order = [((dt, ks), qh) for dt in range(16) for qh in range(2) for ks in range(2)]
        elif kind == 'K': order = [((kb, s), qh) for kb in range(4) for qh in range(2) for s in range(8)]
        else:
            if t == 0: order = [((nt, ks), qh) for ks in range(8) for nt in range(4) for qh in range(2)]
            else: order = [((nt, ks), qh) for nt in range(4) for qh in range(2) for ks in range(8)]
        fidx = {}; reads = []; first = []
        started = set()
        for p, (key, qh) in enumerate(order):
            n = N0(j) + p
            if key not in fidx:
                fi = len(fidx); fidx[key] = fi; f = aF + 4 * fi; tag = ('f', j, fi)
                if kind in 'WV':
                    dt, ks = key
                    base = (vV if kind == 'V' else vWlo if sl < 65536 else vWhi) + (dt & 7)
                    assert kind == 'W' or sl >= 65536
                    o = (sl % 65536) + 32 * ks * 512 + (dt >> 3) * 256
                    rd = [f"ds_read_b64_tr_b16 {ar(f,2)}, v{base} offset:{o}", f"ds_read_b64_tr_b16 {ar(f+2,2)}, v{base} offset:{o + (16 if kind == 'V' else 4) * 512}"]
                elif kind == 'K':
                    kb, s = key
                    o = (0 if t == 0 else sl) + kb * 8192 + (s >> 2) * 256
                    rd = [f"ds_read_b128 {ar(f,4)}, v{vK + (s & 3)} offset:{o}"]
                else:
                    nt, ks = key
                    base = vWoA + nt + (4 if sl >= 65536 else 0)
                    o = (sl % 65536) + 32 * ks * 128
                    rd = [f"ds_read_b64_tr_b16 {ar(f,2)}, v{base} offset:{o}", f"ds_read_b64_tr_b16 {ar(f+2,2)}, v{base} offset:{o + 16 * 128}"]
                reads.append([Item(x, lds_tag=tag) for x in rd]); first.append(n)
            fi = fidx[key]; f = aF + 4 * fi
            accname = (key[0], qh)
            isfirst = accname not in started; started.add(accname)
            if kind == 'W':
                dt, ks = key
                acc = ar(aQA + 8 * dt + 4 * qh, 4)
                mf[n] = f"{MF} {acc}, {ar(f,4)}, {vr(vHB + 16 * (t % 2) + 8 * qh + 4 * ks, 4)}, {0 if (t == 0 and isfirst) else acc}"
            elif kind == 'K':
                kb, s = key
                acc = vr(Sr(t % 2, kb, qh), 4)
                c = acc if not isfirst else (0 if t < 2 else vr(vNEG + 4 * qh, 4))
                mf[n] = f"{MF} {acc}, {ar(f,4)}, {vr(Qr(s, qh), 4)}, {c}"
                first_read.setdefault((j, s, qh), n)
            elif kind == 'V':
                dt, ks = key
                acc = ar(aO + 8 * dt + 4 * qh, 4)
                mf[n] = f"{MF} {acc}, {ar(f,4)}, {vr(Pr(t % 2, qh, ks), 4)}, {0 if (t == 0 and isfirst) else acc}"
            else:
                nt, ks = key
                acc = vr(vOA[t % 2] + 8 * nt + 4 * qh, 4)
                mf[n] = f"{MF} {acc}, {ar(f,4)}, {vr(vOB + 8 * ks + 4 * qh, 4)}, {0 if isfirst else acc}"
                first_read.setdefault((j, ks, qh), n)
            last_write[(j,) + accname] = n
            S_.need[n] = (('f', j, fi),)
        fixed[G * j].append(('BAR', j))
        S_.place_reads(G * j, reads, first, RD_LAST, DIST)
    DMA0 = opt.get('dma0', 5); DMAST = opt.get('dma_step', 7)
    def put_dma(S, its, g0, step):
        for q, (pre, it, aft) in enumerate(its):
            g = g0 + q * step
            for k, x in enumerate(pre): S.fixed[g - len(pre) + k].append(Item(x))
            S.fixed[g].append(it)
            for x in aft: S.fixed[g + 1].append(Item(x))
    for j in range(4, NPH): put_dma(S_, dma_items(j), G * dma_seg(j) + DMA0, DMAST)
    put_dma(S_, gu_dma(0) + gu_dma(1), G * 75 + 4, 4)
    put_dma(S_, gu_dma(2), G * 76 + DMA0, DMAST)
    put_dma(S_, gu_dma(3), G * 77 + DMA0, 5)

    HZ = 4
    def mod_reads(c):
        return [Item(f"ds_read_b128 {vr(vMV + 16 * ks + 4 * q, 4)}, v{vMod} offset:{(2 * c + ks) * 128 + 16 * (q & 1) + (1792 if q < 2 else 0)}", lds_tag=('m', c, ks)) for ks in range(2) for q in range(4)]
    def h_items(c):
        its = []
        for ks in range(2):
            mv = vMV + 16 * ks
            for qh in range(2):
                hb = vHB + 16 * (c % 2) + 8 * qh + 4 * ks
                xr = vXN + 4 * (qh * 14 + 2 * c + ks)
                for e in range(8):
                    its.append(Item(f"v_fma_mix_f32 v{vFT + e}, v{xr + e // 2}, v{mv + e}, v{mv + 8 + e} op_sel:[{e % 2},0,0] op_sel_hi:[1,0,0]", need_lds=((('m', c, ks),) if e == 0 else ())))
                its += [Item(f"v_cvt_pk_bf16_f32 v{hb + q}, v{vFT + 2 * q}, v{vFT + 2 * q + 1}") for q in range(4)]
        return its
    fixed[0][1:1] = mod_reads(0)
    spread(h_items(0), 1, SH - 2)
    for c in range(1, 7):
        for q, it in enumerate(mod_reads(c)): fixed[N0(c - 1) + q].append(it)
        spread(h_items(c), N0(c - 1) + 9, N0(c) - 3)
    for s in range(8):
        for qh in range(2):
            q = Qr(s, qh); a0 = aQA + 8 * (2 * s) + 4 * qh; tb = 48 + 8 * qh
            its = [f"v_accvgpr_read_b32 v{tb + 4 * u + e}, a{a0 + 8 * u + e}" for u in range(2) for e in range(4)]
            its += [f"v_cvt_pk_bf16_f32 v{q}, v{tb}, v{tb + 1}", f"v_cvt_pk_bf16_f32 v{q + 2}, v{tb + 4}, v{tb + 5}",
                   f"v_cvt_pk_bf16_f32 v{q + 1}, v{tb + 2}, v{tb + 3}", f"v_cvt_pk_bf16_f32 v{q + 3}, v{tb + 6}, v{tb + 7}", "s_nop 0",
                   f"v_permlane32_swap_b32 v{q}, v{q + 2}", f"v_permlane32_swap_b32 v{q + 1}, v{q + 3}", "s_nop 0",
                   f"v_permlane16_swap_b32 v{q}, v{q + 2}", f"v_permlane16_swap_b32 v{q + 1}, v{q + 3}"]
            lo = last_write[(6, 2 * s + 1, 1)] + HZ + 4 * qh
            hi = min(lo + 3, first_read[(7, s, qh)] - 3)
            assert hi >= lo, (s, qh, lo, hi)
            spread(its, lo, hi)
    spread([f"v_subrev_u32 v{vK + q}, {SLOT[3]}, v{vK + q}" for q in range(4)], G * 7 + RD_LAST + 1, G * 8 - 1)

    def sm_items(b, sub=False):
        pairs = [(kb, qh, h) for kb in range(4) for qh in range(2) for h in range(2)]
        def ex(k):
            kb, qh, h = pairs[k]; s = Sr(b, kb, qh) + 2 * h
            r = []
            if sub: r += [Item(f"v_add_f32 v{s + e}, v{vNEG + 4 * qh}, v{s + e}") for e in range(2)]
            r += [Item(f"v_exp_f32 v{vT + 2 * (k % 4) + e}, v{s + e}", cost=2) for e in range(2)]
            return r
        def fin(k):
            kb, qh, h = pairs[k]; a = vT + 2 * (k % 4); ps = vPS + qh
            cv = Item(f"v_cvt_pk_bf16_f32 v{Pr(b, qh, kb // 2) + 2 * (kb % 2) + h}, v{a}, v{a + 1}")
            if kb == 0 and h == 0: return [Item(f"v_add_f32 v{ps}, v{a}, v{a + 1}"), cv]
            return [Item(f"v_add_f32 v{ps}, v{a}, v{ps}"), cv, Item(f"v_add_f32 v{ps}, v{a + 1}, v{ps}")]
        seq = ex(0)
        for k in range(1, 16):
            e = ex(k); f = fin(k - 1)
            seq += e[:-1] + f[:1] + e[-1:] + f[1:]
        seq += fin(15)
        return seq
    def max_items(b, kbs, dst, init):
        its = []
        for qh in range(2):
            regs = [Sr(b, kb, qh) + r for kb in kbs for r in range(4)]
            d = dst + qh
            if init:
                its.append(Item(f"v_max3_f32 v{d}, v{regs[0]}, v{regs[1]}, v{regs[2]}")); regs = regs[3:]
            while len(regs) >= 2:
                its.append(Item(f"v_max3_f32 v{d}, v{d}, v{regs[0]}, v{regs[1]}")); regs = regs[2:]
            if regs: its.append(Item(f"v_max_f32 v{d}, v{d}, v{regs[0]}"))
        return its
    jK = lambda t: 7 if t == 0 else 2 * t + 6
    jV = lambda t: 70 if t == 31 else 2 * t + 9

    o0 = vOT
    ep_addr = [
        f"v_and_b32 v{o0}, 63, v0",
        f"v_lshlrev_b32 v{vL16}, 4, v{o0}",
        f"v_add_u32 v{vL16+1}, {14 * 1024}, v{vL16}",
        f"v_lshrrev_b32 v{o0+1}, 3, v{o0}",
        f"v_lshrrev_b32 v{o0+2}, 6, v0",
        f"v_lshl_add_u32 v{o0+1}, v{o0+2}, 6, v{o0+1}",
        f"v_mul_u32_u24 v{o0+1}, 896, v{o0+1}",
        f"v_lshrrev_b32 v{o0+2}, 3, v{o0}",
        f"v_and_b32 v{o0+2}, 6, v{o0+2}",
        f"v_and_b32 v{o0+3}, 7, v{o0}",
        f"v_xor_b32 v{o0+2}, v{o0+2}, v{o0+3}",
        f"v_lshl_add_u32 v{vDWo}, v{o0+2}, 4, v{o0+1}",
        f"v_lshrrev_b32 v{o0+1}, 2, v{o0}",
        f"v_lshlrev_b32 v{o0+1}, 7, v{o0+1}",
        f"v_bfe_u32 v{o0+2}, v{o0}, 3, 2",
        f"v_lshl_add_u32 v{o0+1}, v{o0+2}, 5, v{o0+1}",
        f"v_and_b32 v{o0+2}, 3, v{o0}",
        f"v_lshl_add_u32 v{vWoA}, v{o0+2}, 3, v{o0+1}",
    ] + [f"v_xor_b32 v{vWoA+q}, {32 * q}, v{vWoA}" for q in range(1, 4)] + [f"v_add_u32 v{vWoA+4+q}, 0x10000, v{vWoA+q}" for q in range(4)]
    for q in range(7):
        ep_addr += [f"v_add_u32 v{o0+1}, {64 * q}, v{o0}", f"v_mul_u32_u24 v{o0+1}, 4682, v{o0+1}", f"v_lshrrev_b32 v{o0+1}, 16, v{o0+1}",
                    f"v_mul_u32_u24 v{o0+1}, 3360, v{o0+1}", f"v_add3_u32 v{vGU+q}, v{o0+1}, v{vL16}, {'s%d' % sE if q >= 4 else 0}"]
    ep_addr.insert(0, f"s_mov_b32 s{sE}, 4096")
    ep_addr += [f"v_mov_b32 v{o0+1}, {OOB}", "v_cmp_eq_u32 vcc, 0, v0", f"v_mov_b32 v{o0+2}, 0", f"v_mov_b32 v{o0+3}, 1",
                f"v_cndmask_b32 v{vFst}, v{o0+1}, v{o0+2}, vcc"]
    spread(ep_addr, N0(7) + 16, N0(7) + 50)
    fixed[N0(8) + 2].append(Item(f"buffer_store_dword v{o0+2}, v{vFst}, {sr(sWS,4)}, s{sF} offen{SC}", vm_tag='fz'))
    fixed[G * 11 + 2].append(Item(f"s_and_b32 s{sE}, s2, 15\ns_lshl_b32 s{sE}, s{sE}, 2", cost=2))
    fixed[G * 11 + 3].append(Item(f"buffer_atomic_add v{o0+3}, v{vFst}, {sr(sDbg,4)}, s{sE} offen offset:128{SC}", need_vm=('fz',)))
    chk = [f"v_min_u32 v{o0}, 16, v0", f"v_mov_b32 v{o0+1}, 56", f"v_cmp_gt_u32 vcc, 16, v0", f"v_lshlrev_b32 v{o0}, 2, v{o0}", f"v_mov_b32 v{o0+2}, {OOB}",
           f"v_cndmask_b32 v{o0+1}, v{o0+1}, 16, vcc", "v_cmp_gt_u32 vcc, 64, v0", "s_nop 1",
           f"v_cndmask_b32 v{o0}, v{o0+2}, v{o0}, vcc", f"v_cndmask_b32 v{o0+1}, 0, v{o0+1}, vcc"]
    CH0 = N0(65) + 4
    for k, x in enumerate(chk): fixed[CH0 + k].append(Item(x))
    CHKLD = f"buffer_load_dword v{o0+2}, v{o0}, {sr(sDbg,4)}, 0 offen offset:128{SC}"
    fixed[CH0 + len(chk) + 1].append(Item(CHKLD, vm_tag='chk'))
    fixed[N0(69) + 4].append(Item(f"v_cmp_ne_u32 vcc, v{o0+1}, v{o0+2}", need_vm=('chk',)))
    fixed[N0(69) + 6].append(Item("s_cbranch_vccnz CHK_SLOW\nCHK_BACK:"))

    for t in range(32):
        sdone = N0(jK(t)) + G - 1
        pv0 = N0(jV(t))
        if t == 0:
            spread(max_items(0, [0, 1, 2], vTM, True), N0(7) + 47 + HZ, sdone + 1)
            its = max_items(0, [3], vTM, False)
            for qh in range(2):
                its += xlane_reduce("v_max_f32", vTM + qh, vTM + 2)
                its.append(Item(f"v_sub_f32 v{vNEG + 4 * qh}, 0, v{vTM + qh}"))
            its += sm_items(0, sub=True)
            its += [Item(f"v_mov_b32 v{vL + qh}, v{vPS + qh}") for qh in range(2)]
            spread(its, sdone + HZ, pv0 - 2)
            spread([f"v_mov_b32 v{vNEG + 4 * qh + q}, v{vNEG + 4 * qh}" for qh in range(2) for q in range(1, 4)], pv0, pv0 + 10)
            continue
        its = sm_items(t % 2, sub=(t == 1))
        its.append(Item(f"v_max_f32 v{vTM}, v{vPS}, v{vPS + 1}"))
        its.append(Item(f"v_cmp_nge_f32 vcc, s{sThr}, v{vTM}"))
        spread(its, sdone + 2, pv0 - 3)
        post[pv0 - 1].append(Item(f"s_cbranch_vccnz @RARE{t % 2}@\n@BACK@:"))
        valu[pv0] += [Item(f"v_add_f32 v{vL + qh}, v{vL + qh}, v{vPS + qh}") for qh in range(2)]

    pv = N0(70)
    its = []
    for qh in range(2):
        its += xlane_reduce("v_add_f32", vL + qh, vTM) + [Item(f"v_rcp_f32 v{vRL + qh}, v{vL + qh}", cost=2)]
    spread(its, pv + 1, pv + 10)
    for ks in range(8):
        for qh in range(2):
            tb = vOT + 8 * qh
            its = [f"v_accvgpr_read_b32 v{tb + 4 * u + e}, a{aO + 8 * (2 * ks + u) + 4 * qh + e}" for u in range(2) for e in range(4)]
            its += [f"v_cvt_pk_bf16_f32 v{vOB + 8 * ks + 4 * qh + q}, v{tb + 2 * q}, v{tb + 2 * q + 1}" for q in range(4)]
            lo = pv + 12 + (2 * ks + qh) * 6; hi = lo + 5
            assert lo >= last_write[(70, 2 * ks + 1, 1)] + HZ and hi <= first_read[(71, ks, 0)] - 2, (ks, lo, hi)
            spread(its, lo, hi)
    for c in range(7):
        A = vOA[c % 2]; ST = vST[c % 2]
        k = 0
        for a in range(2):
            for qh in range(2):
                its = []
                if a == 0 and qh == 0: its.append(Item(f"s_add_u32 s{sXo}, s{sPart}, {c * 2048}"))
                src = [A + 8 * (2 * a + u) + 4 * qh + e for u in range(2) for e in range(4)]
                st = ST + 8 * a + 4 * qh
                its += [Item(f"v_mul_f32 v{x}, v{vRL + qh}, v{x}") for x in src]
                its += [Item(f"v_cvt_pk_bf16_f32 v{st + q}, v{src[2 * q]}, v{src[2 * q + 1]}") for q in range(4)]
                its.append(Item(f"buffer_store_dwordx4 {vr(st, 4)}, v{vL16 + qh}, {sr(sWS,4)}, s{sXo} offen" + (" offset:1024" if a else "") + SC, vm_tag=('st', c)))
                lw = last_write[(71 + c, 2 * a + 1, qh)]
                if c == 0: lo = N0(72) + HZ + 8 * k; hi = lo + 7
                else: lo = last_write[(71 + c, 2 * a + 1, 0)] + HZ + 14 * qh + (10 if c == 1 and a == 0 else 0); hi = lo + 13 - (5 if c == 1 and a == 0 else 0)
                assert lo >= lw + HZ
                if hi >= NG:
                    valu[NG].append(Item("s_nop 7")); valu[NG] += its
                else:
                    spread(its, lo, hi)
                k += 1

    E = Emitter()
    P = E.raw
    def PL(l):
        for x in l: E.raw(x)
    def poll(name, load, cmp_, dst):
        P(f"""s_mov_b32 s{sE}, {POLLMAX}
{name}_L:
{load}
s_waitcnt vmcnt(0)
{cmp_}
s_sub_u32 s{sE}, s{sE}, 1
s_cbranch_scc1 {name}_D
s_cmp_eq_u64 vcc, -1
s_cbranch_scc1 {name}_D
s_sleep 1
s_branch {name}_L
{name}_D:""")
    P("s_cmp_ge_u32 s2, 256\ns_cbranch_scc1 K_END")
    PL(stamp_lines())
    W = vL; L = vL + 1; t0 = vFT; t1 = t0 + 1; t2 = t0 + 2; t3 = t0 + 3; t4 = t0 + 4
    pW = 64; pC = 92; pA = 40; pH = 48; pT = 56
    P(f"""s_load_dwordx8 s[{KA+16}:{KA+23}], s[0:1], 64
s_load_dwordx16 s[{KA}:{KA+15}], s[0:1], 0
s_load_dwordx4 s[{KA+24}:{KA+27}], s[0:1], 96
v_lshrrev_b32 v{W}, 6, v0
v_and_b32 v{L}, 63, v0
v_readfirstlane_b32 s{sW}, v{W}
s_and_b32 s{sHead}, s2, 7
s_lshr_b32 s{sQb}, s2, 3
s_lshl_b32 s{sHead}, s{sHead}, 1
s_and_b32 s{sA}, s{sQb}, 1
s_add_u32 s{sHead}, s{sHead}, s{sA}
s_lshr_b32 s{sQb}, s{sQb}, 1
v_lshrrev_b32 v{t0}, 2, v0
v_and_b32 v{t1}, 3, v0
v_mul_u32_u24 v{t2}, 5376, v{t0}
v_lshl_add_u32 v{t2}, v{t1}, 4, v{t2}
v_lshlrev_b32 v{t3}, 1, v{t0}
v_and_b32 v{t0}, 15, v{L}
v_lshrrev_b32 v{t1}, 4, v{L}
v_mul_u32_u24 v{vX}, 896, v{t0}
v_lshl_add_u32 v{vX}, v{t1}, 4, v{vX}
s_lshl_b32 s{sA}, s{sQb}, 2
s_add_u32 s{sA}, s{sA}, s{sW}
s_mul_i32 s{sXo}, s{sA}, {32 * 896}
s_add_u32 s{sB}, s{sXo}, {16 * 896}
s_lshl_b32 s{sD}, s2, 6
s_cmp_ge_u32 s2, 84
s_waitcnt lgkmcnt(0)
{srd(sWm, KA + 20, None, 448 * 5376)}
{srd(sC, KA + 18, None, 896)}
{srd(sX, KA + 0, None, 2048 * 896)}
s_cbranch_scc1 PRO_A""")
    for i in range(7): P(f"buffer_load_ushort v{pC + i}, v{t3}, {sr(sC,4)}, 0 offen" + (f" offset:{128 * i}" if i else ""))
    for i in range(7):
        P(f"buffer_load_dwordx4 {vr(pW + 4 * i, 4)}, v{t2}, {sr(sWm,4)}, s{sD} offen")
        if i < 6: P(f"s_add_u32 s{sD}, s{sD}, {64 * 5376}")
    P("PRO_A:")
    for s in range(14):
        for qh in range(2):
            E.item(Item(f"buffer_load_dwordx4 {vr(vXN + 4 * (14 * qh + s), 4)}, v{vX}, {sr(sX,4)}, s{sB if qh else sXo} offen" + (f" offset:{64 * s}" if s else ""), vm_tag=('x', s)))
    P(f"""{srd(sWS, KA + 26, None, WS_SIZE)}
{srd(sDbg, KA + 24, None, 256)}
s_lshl_b32 s{sW8}, s{sW}, 13
s_lshl_b32 s{sD}, s{sHead}, 9
{srd(sWq, KA + 6, f's{sD}', f's_sub_u32 s{sWq+2}, {448 * 8192}, s{sD}')}
v_lshrrev_b32 v{t0}, 5, v{L}
v_and_b32 v{t1}, 31, v{L}
v_lshl_add_u32 v{t2}, v{W}, 4, v{t0}
v_lshlrev_b32 v{t2}, 13, v{t2}
v_lshlrev_b32 v{t4}, 1, v{t0}
v_xor_b32 v{t4}, v{t4}, v{t1}
v_lshl_add_u32 v{vDW}, v{t4}, 4, v{t2}
v_xor_b32 v{vDW+1}, 64, v{vDW}
v_xor_b32 v{vDW+2}, 128, v{vDW}
v_xor_b32 v{vDW+3}, 192, v{vDW}
s_cmp_ge_u32 s2, 84
s_cbranch_scc1 PRO_B""")
    P(f"s_mov_b32 s{sD}, {f2u(-math.log2(math.e))}")
    PL([f"v_mov_b32 v{pA + e}, 0" for e in range(8)])
    P(f"""v_lshrrev_b32 v{t2}, 4, v0
v_and_b32 v{t3}, 3, v0
v_lshlrev_b32 v{t2}, 7, v{t2}
v_lshl_add_u32 v{t2}, v{t3}, 5, v{t2}
v_add_u32 v{t2}, {LDS_SCR}, v{t2}
v_lshlrev_b32 v{t3}, 10, v{t0}
v_lshl_add_u32 v{t3}, v{t1}, 2, v{t3}
v_add_u32 v{t3}, {LDS_SCR}, v{t3}
s_waitcnt vmcnt(35)""")
    PL([f"v_lshlrev_b32 v{pC + i}, 16, v{pC + i}" for i in range(7)])
    PL([f"v_mul_f32 v{pT + i}, s{sD}, v{pC + i}" for i in range(7)])
    PL([f"v_exp_f32 v{pT + i}, v{pT + i}" for i in range(7)])
    PL([f"v_add_f32 v{pT + i}, 1.0, v{pT + i}" for i in range(7)])
    PL([f"v_rcp_f32 v{pT + i}, v{pT + i}" for i in range(7)])
    PL([f"v_mul_f32 v{pC + i}, v{pC + i}, v{pT + i}" for i in range(7)])
    PL([f"v_cvt_pk_bf16_f32 v{pC + i}, v{pC + i}, 0" for i in range(7)])
    PL([f"v_lshlrev_b32 v{pH + i}, 16, v{pC + i}" for i in range(7)])
    for i in range(7):
        P(f"s_waitcnt vmcnt({34 - i})")
        PL([f"v_dot2c_f32_bf16 v{pA + e}, v{pW + 4 * i + e // 2}, v{(pH if e % 2 else pC) + i}" for e in range(8)])
    P("s_nop 2")
    for sh in (4, 8): PL([f"v_add_f32_dpp v{pA + e}, v{pA + e}, v{pA + e} row_ror:{sh} row_mask:0xf bank_mask:0xf" for e in range(8)])
    P(f"""ds_write_b128 v{t2}, {vr(pA, 4)}
ds_write_b128 v{t2}, {vr(pA + 4, 4)} offset:16
s_mul_i32 s{sD}, s2, 4682
s_lshr_b32 s{sD}, s{sD}, 16
s_cmp_lg_u32 s{sW}, 0
s_waitcnt lgkmcnt(0)
s_barrier
s_cbranch_scc1 PRO_B""")
    PL([f"ds_read_b32 v{pA + k}, v{t3} offset:{128 * k}" for k in range(8)])
    P(f"""s_cmp_eq_u32 s{sD}, 1
s_cselect_b32 s{sA}, 1.0, 0
s_cmp_eq_u32 s{sD}, 4
s_cselect_b32 s{sA}, 1.0, s{sA}
s_cmp_lt_u32 s{sD}, 2
s_cselect_b32 s{sB}, {f2u(math.log2(math.e) / 16)}, 1.0
s_cselect_b32 s{sD}, 0, 512
s_lshl_b32 s{sE}, s2, 7
s_add_u32 s{sD}, s{sD}, s{sE}
s_lshl_b32 s{sE}, s2, 2
s_cmp_lt_u32 s2, 28
s_cselect_b32 s{sE}, s{sE}, 192
v_lshlrev_b32 v{t2}, 30, v{t0}
v_lshl_add_u32 v{t2}, v{t1}, 2, v{t2}
v_cmp_eq_u32 vcc, 0, v{L}
v_mov_b32 v{t3}, {OOB}
v_mov_b32 v{pT}, 1
v_cndmask_b32 v{t3}, v{t3}, 0, vcc
s_waitcnt lgkmcnt(0)
v_add_f32 v{pA}, v{pA}, v{pA+1}
v_add_f32 v{pA+2}, v{pA+2}, v{pA+3}
v_add_f32 v{pA+4}, v{pA+4}, v{pA+5}
v_add_f32 v{pA+6}, v{pA+6}, v{pA+7}
v_add_f32 v{pA}, v{pA}, v{pA+2}
v_add_f32 v{pA+4}, v{pA+4}, v{pA+6}
v_add_f32 v{pA}, v{pA}, v{pA+4}
v_mov_b32 v{pA+1}, v{pA}
s_nop 1
v_permlane32_swap_b32 v{pA}, v{pA+1}
v_add_f32 v{pA}, v{pA}, v{pA+1}
v_cvt_pk_bf16_f32 v{pA}, 0, v{pA}
v_add_f32 v{pA}, s{sA}, v{pA}
v_cvt_pk_bf16_f32 v{pA}, 0, v{pA}
v_mul_f32 v{pA}, s{sB}, v{pA}
buffer_store_dword v{pA}, v{t2}, {sr(sWS,4)}, s{sD} offen{SC}
s_waitcnt vmcnt(0)
buffer_atomic_add v{pT}, v{t3}, {sr(sDbg,4)}, s{sE} offen{SC}
PRO_B:""")
    def w_dma(j):
        for pre, it, aft in dma_items(j):
            for x in pre: P(x)
            E.item(it)
    for j in range(NPRE): w_dma(j)
    P(f"""s_mov_b32 s{sKo}, 0
s_mov_b32 s{sVo}, 0
s_mov_b32 s{sThr}, {hex((127 + THR_LOG2) << 23)}
s_lshl_b32 s{sA}, s{sQb}, 2
s_add_u32 s{sA}, s{sA}, s{sW}
s_mul_i32 s{sA}, s{sA}, {28 * 1024}
s_mul_i32 s{sB}, s{sHead}, {FRAGB}
s_add_u32 s{sPart}, s{sA}, s{sB}
s_add_u32 s{sPart}, s{sPart}, {WS_PART}
s_lshl_b32 s{sD}, s{sHead}, 20
{srd(sK, KA + 2, f's{sD}', 0x100000)}
{srd(sV, KA + 4, f's{sD}', 0x100000)}
s_mul_i32 s{sD}, s{sHead}, {256 * 896}
{srd(sWo, KA + 8, f's{sD}', 256 * 896)}
s_and_b32 s{sA}, s{sW}, 1
s_mul_i32 s{sD}, s{sA}, {32 * 3584}
s_mul_i32 s{sB}, s{sHead}, 224
s_add_u32 s{sD}, s{sD}, s{sB}
s_mul_i32 s{sGUl}, s{sA}, 7168
s_cmp_lt_u32 s{sW}, 2
s_cselect_b32 s{sGU}, s{KA+12}, s{KA+14}
s_cselect_b32 s{sGU+1}, s{KA+13}, s{KA+15}
s_cselect_b32 s{sA}, 0, 14464
s_add_u32 s{sGUl}, s{sGUl}, s{sA}
{srd(sGU, sGU, f's{sD}', f's_sub_u32 s{sGU+2}, {448 * 3584}, s{sD}')}
s_lshl_b32 s{sF}, s{sQb}, 7
s_lshl_b32 s{sA}, s{sHead}, 2
s_add_u32 s{sF}, s{sF}, s{sA}
s_add_u32 s{sF}, s{sF}, {WS_FLAG}""")
    P(f"""v_and_b32 v{t2}, 15, v{L}
v_lshrrev_b32 v{t3}, 4, v{L}
v_lshlrev_b32 v{vMod}, 5, v{t3}
v_add_u32 v{vMod}, {LDS_MOD}, v{vMod}
v_xor_b32 v{t3}, v{t3}, v{t2}
v_lshlrev_b32 v{t2}, 9, v{t2}
v_lshl_add_u32 v{t3}, v{t3}, 4, v{t2}
v_add_u32 v{t3}, {SLOT[3]}, v{t3}""")
    for q in range(4): P(f"v_xor_b32 v{vK + q}, {64 * q}, v{t3}")
    P(f"""v_lshrrev_b32 v{t2}, 2, v{L}
v_lshlrev_b32 v{t3}, 9, v{t2}
v_and_b32 v{t2}, 7, v{t2}
v_lshl_add_u32 v{t3}, v{t2}, 5, v{t3}
v_and_b32 v{t2}, 3, v{L}
v_lshl_add_u32 v{t3}, v{t2}, 3, v{t3}
v_lshrrev_b32 v{t2}, 4, v{L}
v_lshl_add_u32 v{t2}, v{t2}, 11, v{t3}""")
    for q in range(8):
        P(f"v_xor_b32 v{vV + q}, {0x10000 + 32 * q}, v{t3}")
        P(f"v_xor_b32 v{vWlo + q}, {32 * q}, v{t2}")
        P(f"v_xor_b32 v{vWhi + q}, {0x10000 + 32 * q}, v{t2}")
    P(f"v_lshlrev_b32 v{t2}, 13, v{W}")
    P(f"v_lshl_add_u32 v{t2}, v{t0}, 9, v{t2}")
    P(f"v_xor_b32 v{t3}, v{t1}, v{t0}")
    P(f"v_lshl_add_u32 v{t3}, v{t3}, 4, v{t2}")
    for q in range(8): P(f"v_xor_b32 v{vDK + q}, {(2 * q) * 16 + (q // 4) * 4096}, v{t3}")
    P(f"v_lshl_add_u32 v{t3}, v{t4}, 4, v{t2}")
    for q in range(8): P(f"v_xor_b32 v{vDV + q}, {(q % 4) * 64 + (q // 4) * 4096}, v{t3}")
    S1 = 40; S2 = 42; TT = 44
    P(f"s_mov_b32 s{sA}, 0x3f803f80\ns_mov_b32 s{sB}, {f2u(1 / 448)}\ns_mov_b32 s{sD}, 0xffff0000")
    PL([f"v_mov_b32 v{S1 + k}, 0" for k in range(4)])
    for s in range(14):
        E.wait_vm((('x', s),))
        for d in range(4):
            for qh in range(2):
                x = vXN + 4 * (14 * qh + s) + d
                P(f"v_dot2c_f32_bf16 v{S1 + qh}, s{sA}, v{x}\nv_dot2c_f32_bf16 v{S2 + qh}, v{x}, v{x}")
    P("s_nop 2")
    PL(xlane_multi("v_add_f32", [S1, S1 + 1, S2, S2 + 1], [TT, TT + 1, TT + 2, TT + 3]))
    for qh in range(2): P(f"v_mul_f32 v{S1 + qh}, s{sB}, v{S1 + qh}\nv_mul_f32 v{S2 + qh}, s{sB}, v{S2 + qh}")
    for qh in range(2): P(f"v_fma_f32 v{S2 + qh}, -v{S1 + qh}, v{S1 + qh}, v{S2 + qh}")
    for qh in range(2): P(f"v_max_f32 v{S2 + qh}, 0, v{S2 + qh}")
    for qh in range(2): P(f"v_add_f32 v{S2 + qh}, {f2u(1e-5)}, v{S2 + qh}")
    for qh in range(2): P(f"v_rsq_f32 v{S2 + qh}, v{S2 + qh}")
    P("s_nop 0")
    for qh in range(2): P(f"v_mul_f32 v{S1 + qh}, -v{S1 + qh}, v{S2 + qh}")
    for s in range(14):
        for qh in range(2):
            x = vXN + 4 * (14 * qh + s)
            for d in range(0, 4, 2):
                P(f"""v_lshlrev_b32 v{TT}, 16, v{x+d}
v_lshlrev_b32 v{TT+1}, 16, v{x+d+1}
v_and_b32 v{TT+2}, s{sD}, v{x+d}
v_and_b32 v{TT+3}, s{sD}, v{x+d+1}
v_fma_mixlo_f16 v{x+d}, v{TT}, v{S2+qh}, v{S1+qh}
v_fma_mixlo_f16 v{x+d+1}, v{TT+1}, v{S2+qh}, v{S1+qh}
v_fma_mixhi_f16 v{x+d}, v{TT+2}, v{S2+qh}, v{S1+qh}
v_fma_mixhi_f16 v{x+d+1}, v{TT+3}, v{S2+qh}, v{S1+qh}""")
    PL(stamp_lines())
    P(f"""s_cmp_lg_u32 s{sW}, 0
s_cbranch_scc1 PRO_C
v_min_u32 v{t2}, 27, v{L}
v_lshlrev_b32 v{t2}, 2, v{t2}
v_lshlrev_b32 v{t3}, 4, v{L}""")
    poll("POLL0", f"buffer_load_dword v{t4}, v{t2}, {sr(sDbg,4)}, 0 offen{SC}", f"v_cmp_ne_u32 vcc, 0, v{t4}", t4)
    for q in range(4): P(f"buffer_load_dwordx4 {vr(vMV + 4 * q, 4)}, v{t3}, {sr(sWS,4)}, 0 offen" + (f" offset:{1024 * q}" if q else "") + SC)
    P(f"v_add_u32 v{t3}, {LDS_MOD}, v{t3}")
    for q in range(4): P(f"s_waitcnt vmcnt({3 - q})\nds_write_b128 v{t3}, {vr(vMV + 4 * q, 4)}" + (f" offset:{1024 * q}" if q else ""))
    P("s_waitcnt lgkmcnt(0)\nPRO_C:")
    for j in range(NPRE, 4): w_dma(j)
    head = E.out; E.out = []

    def bar(E, it):
        j = it[1]
        if j > 0: E.wait_lds((('f', j - 1, 31),))
        E.wait_vm((('tile', j),))
    segs = S_.emit(E, G, MINAGE, bar)

    import tail
    tl = tail.gen_tail(E, opt, poll, stamp_lines, gu_dma, put_dma, GU_SLOT)

    clean = lambda l: [x.replace('@RARE0@', 'R').replace('@RARE1@', 'R').replace('@BACK@', 'B') for x in l]
    best = (0, 0)
    for a in range(len(segs)):
        b = a
        while b + 4 < len(segs) and segs[b] == segs[b + 4]: b += 1
        ntrip = (b + 4 - a) // 4
        if ntrip > best[1]: best = (a, ntrip)
    a, ntrip = best
    out = list(head)
    stubs = []
    cnt = [0]
    def put(seg, k=None):
        if stamps is not None and k in stamps: out.extend(stamp_lines())
        for x in seg:
            if '@RARE' in x:
                cnt[0] += 1
                par = x[x.index('@RARE') + 5]
                stubs.extend([f"K_STUB{cnt[0]}:", f"s_call_b64 {sr(sRet,2)}, K_RARE{par}", f"s_branch K_BACK{cnt[0]}"])
                x = x.replace(f'@RARE{par}@', f"K_STUB{cnt[0]}")
            x = x.replace('@BACK@', f"K_BACK{cnt[0]}")
            out.append(x)
    for k, s in enumerate(segs[:a]): put(s, k)
    out.extend(stamp_lines())
    out.append(f"s_mov_b32 s{sCnt}, {ntrip - 1}")
    if opt.get('align'): out.append(f".p2align {opt['align']}")
    out.append("K_LOOP:")
    abl = [_re.compile(x) for x in opt.get('ablate', [])]
    for s in segs[a:a + 4]: put([x for x in s if not any(r.search(x) for r in abl)])
    out += [f"s_sub_u32 s{sCnt}, s{sCnt}, 1", "s_cbranch_scc0 K_LOOP"]
    rest = segs[a + 4 * ntrip:]
    if stamps is not None: out.append(f"v_mov_b32 v{vSTMP}, v255"); streg[0] = vSTMP
    out.extend(stamp_lines())
    for k, s in enumerate(rest): put(s, k + len(segs) - len(rest))
    tl = [y for x in tl for y in (stamp_lines() if x == '@STAMP@' else [x])]
    out += tl
    errs = check_hazards(clean(head + [x for s in segs for x in s] + tl), 'main')
    out.append("K_FIN:")
    if stamps is not None:
        out += ["s_waitcnt vmcnt(0)"] + stamp_lines()
        out += [f"s_lshl_b32 s{sA}, s2, 2", f"s_add_u32 s{sA}, s{sA}, s{sW}", f"s_lshl_b32 s{sA}, s{sA}, 8", f"s_add_u32 s{sA}, s{sA}, {WS_END}",
                "v_and_b32 v1, 63, v0", "v_lshlrev_b32 v1, 2, v1", f"buffer_store_dword v{vSTMP}, v1, {sr(sWS,4)}, s{sA} offen"]
    out += ["K_END:", "s_endpgm"]
    out += stubs
    E.out = ["CHK_SLOW:"]
    poll("POLLC", CHKLD, f"v_cmp_eq_u32 vcc, v{o0+1}, v{o0+2}", o0 + 2)
    out += E.out + ["s_branch CHK_BACK"]; E.out = []
    for b in range(2):
        r = [f"K_RARE{b}:", "s_nop 15"]
        r += [x.text for x in max_items(b, [0, 1, 2, 3], vTM, True)]
        for qh in range(2):
            r += [x.text for x in xlane_reduce("v_max_f32", vTM + qh, vTM + 2)]
            r += [f"v_max_f32 v{vTM + qh}, 0, v{vTM + qh}"]
        for qh in range(2):
            r += [f"v_sub_f32 v{vTM + 2 + qh}, 0, v{vTM + qh}", f"v_exp_f32 v{vTM + 2 + qh}, v{vTM + 2 + qh}"]
        for qh in range(2):
            regs = [Sr(bb, kb, qh) + e for bb in range(2) for kb in range(4) for e in range(4)] + [vNEG + 4 * qh + e for e in range(4)]
            r += [f"v_sub_f32 v{x}, v{x}, v{vTM + qh}" for x in regs]
            r += [f"v_mul_f32 v{vL + qh}, v{vL + qh}, v{vTM + 2 + qh}"]
        for q in range(0, 128, 8):
            r += [f"v_accvgpr_read_b32 v{vT + e}, a{aO + q + e}" for e in range(8)]
            r += [f"v_mul_f32 v{vT + e}, v{vT + e}, v{vTM + 2 + e // 4}" for e in range(8)]
            r += [f"v_accvgpr_write_b32 a{aO + q + e}, v{vT + e}" for e in range(8)]
        r += [x.text for x in sm_items(b)]
        r += ["s_nop 4", f"s_setpc_b64 {sr(sRet,2)}"]
        errs += check_hazards(r, f'rare{b}')
        out += r
    info = dict(loop_start=a, ntrip=ntrip, nseg=len(segs), nstamps=nst[0])
    return out, errs, info
```

```python
from fused import *

vDn = 8; vGUr = 9; vDnr = 12; vP1 = 18; vP3 = 19; vXo = 20; vMo = 22; vX1s = 24; vMask = 26; vFld = 28; vScrW = 29; vScrR = 30; vLn = 31
vTt = 32
vGbo = 1; vOo = 2; vRW = 3; vRR = 4; vFv = 5
vXr = 40; vGA = 64; vB1 = 80; vB0 = 96; vAC = 112; vPL = 128
aH2 = 0; aR = 128; NR1 = 32; vG = 64; vGT = 176; vHH = 192
aHB = 0; vGB = 64; vR2 = 80; NR2 = 28; vD = 192; vX1 = 40

def gen_tail(E, opt, poll, stamp_lines, gu_dma, put_dma, GU_SLOT):
    SC = ' sc1'
    P = E.raw
    def PL(l):
        for x in l: E.raw(x)
    def dma_now(its):
        for pre, it, aft in its:
            for x in pre: P(x)
            if E.out[-1].startswith('s_add_u32 m0'): P('s_nop 0')
            E.item(it)
    def flag(stage):
        P(f"v_mov_b32 v{vFv}, {stage}\nbuffer_store_dword v{vFv}, v{vFst}, {sr(sWS,4)}, s{sF} offen{SC}")
    def wait_flags(name, stage, srow):
        P(f"s_cmp_lg_u32 s{sW}, 0\ns_cbranch_scc1 {name}_X")
        poll(name, f"buffer_load_dword v{vTt}, v{vFld}, {sr(sWS,4)}, s{srow} offen{SC}", f"v_cmp_le_u32 vcc, {stage}, v{vTt}", vTt)
        P(f"{name}_X:\ns_barrier")
    a, b, c, d, e_ = vTt, vTt + 1, vTt + 2, vTt + 3, vTt + 4
    P('@STAMP@')
    sRow = sKo; sRow3 = sVo; sPo = sPart; sH2s = sXo; sX1s = sCnt; sXs = sThr
    P(f"""v_and_b32 v{a}, 63, v0
v_lshlrev_b32 v{vLn}, 4, v{a}
v_lshrrev_b32 v{b}, 3, v{a}
v_and_b32 v{c}, 7, v{a}
v_cmp_gt_u32 vcc, 56, v{a}
v_mov_b32 v{e_}, {OOB}
s_mul_i32 s{sA}, s{sW}, 14
v_cndmask_b32 v{e_}, v{e_}, 0, vcc
v_cndmask_b32 v{vMask}, 0, 1.0, vcc
v_lshl_add_u32 v{d}, v{c}, 4, v{e_}
v_lshl_add_u32 v{vP1}, v{b}, 8, v{d}
v_lshl_add_u32 v{vP3}, v{b}, 9, v{d}""")
    for p in range(2):
        P(f"""v_add_u32 v{vMo+p}, s{sA}, v{b}
s_add_u32 s{sA}, s{sA}, 7
v_and_b32 v{vXo+p}, 3, v{vMo+p}
v_lshrrev_b32 v{vMo+p}, 2, v{vMo+p}
v_lshl_add_u32 v{vMo+p}, v{vMo+p}, 3, v{vXo+p}
v_lshl_add_u32 v{vX1s+p}, v{vMo+p}, 9, v{d}
v_mul_u32_u24 v{vXo+p}, 896, v{c}
v_lshl_add_u32 v{vXo+p}, v{vMo+p}, 3, v{vXo+p}
v_add_u32 v{vXo+p}, v{vXo+p}, v{e_}
v_lshl_add_u32 v{vMo+p}, v{vMo+p}, 4, v{e_}""")
    P(f"""s_lshl_b32 s{sA}, s{sQb}, 4
s_add_u32 s{sA}, s{sA}, s{sHead}
s_mul_i32 s{sXs}, s{sA}, {8 * 896}
s_mov_b32 s{sB}, {WS_GA}
s_mov_b32 s{sD}, {WS_B1}""")
    for p in range(2):
        for hf in range(2):
            E.item(Item(f"buffer_load_dwordx2 {vr(vXr + 4 * p + 2 * hf, 2)}, v{vXo+p}, {sr(sX,4)}, s{sXs} offen" + (" offset:32" if hf else ""), vm_tag='t2e'))
            E.item(Item(f"buffer_load_dwordx4 {vr(vGA + 8 * p + 4 * hf, 4)}, v{vMo+p}, {sr(sWS,4)}, s{sB} offen" + (" offset:64" if hf else "") + SC, vm_tag='t2e'))
            E.item(Item(f"buffer_load_dwordx4 {vr(vB0 + 8 * p + 4 * hf, 4)}, v{vMo+p}, {sr(sWS,4)}, s{sB} offen offset:{1792 + 64 * hf}" + SC, vm_tag='t2e'))
            E.item(Item(f"buffer_load_dwordx4 {vr(vB1 + 8 * p + 4 * hf, 4)}, v{vMo+p}, {sr(sWS,4)}, s{sD} offen" + (" offset:64" if hf else "") + SC, vm_tag='t2e'))
    E.wait_lds((('f', 77, 31),))
    E.wait_vm((('st', 6),))
    P("s_barrier")
    flag(1)
    P('@STAMP@')
    dma_now(gu_dma(4))
    P(f"""s_lshr_b32 s{sB}, s{sA}, 1
s_mul_i32 s{sPo}, s{sB}, 14336
s_and_b32 s{sB}, s{sA}, 1
s_lshl_b32 s{sB}, s{sB}, 7
s_add_u32 s{sPo}, s{sPo}, s{sB}
s_mul_i32 s{sB}, s{sW}, {14 * 256}
s_add_u32 s{sPo}, s{sPo}, s{sB}
s_add_u32 s{sPo}, s{sPo}, {WS_PART}
s_lshr_b32 s{sB}, s{sA}, 2
s_and_b32 s{sA}, s{sA}, 3
s_lshl_b32 s{sA}, s{sA}, 7
s_mul_i32 s{sH2s}, s{sB}, 28672
s_lshl_b32 s{sX1s}, s{sH2s}, 1
s_add_u32 s{sX1s}, s{sX1s}, s{sA}
s_add_u32 s{sX1s}, s{sX1s}, {WS_X1}
s_add_u32 s{sH2s}, s{sH2s}, s{sA}
s_mul_i32 s{sB}, s{sW}, {14 * 512}
s_add_u32 s{sH2s}, s{sH2s}, s{sB}
s_add_u32 s{sH2s}, s{sH2s}, {WS_H2}
s_lshl_b32 s{sRow}, s{sQb}, 7
s_add_u32 s{sRow}, s{sRow}, {WS_FLAG}
s_lshl_b32 s{sRow3}, s{sHead}, 7
s_add_u32 s{sRow3}, s{sRow3}, {WS_FLAG}
v_and_b32 v{vFld}, 15, v{a}
v_lshlrev_b32 v{vFld}, 2, v{vFld}
v_lshlrev_b32 v{vScrR}, 3, v{c}
v_add_u32 v{vScrR}, {LDS_LN}, v{vScrR}
s_lshl_b32 s{sA}, s{sW}, 6
v_add_u32 v{vScrW}, s{sA}, v{vScrR}""")
    P(f"""v_bfe_u32 v{b}, v{a}, 2, 2
v_lshrrev_b32 v{c}, 5, v{a}
v_lshl_add_u32 v{b}, v{c}, 2, v{b}
v_and_b32 v{c}, 3, v{a}
v_lshlrev_b32 v{c}, 3, v{c}
v_bfe_u32 v{d}, v{a}, 4, 1
v_mul_u32_u24 v{vGUr}, 224, v{b}
v_mul_u32_u24 v{e_}, 14464, v{d}
v_add3_u32 v{vGUr}, v{vGUr}, v{e_}, v{c}
v_add_u32 v{vGUr+1}, 0x10000, v{vGUr}
v_add_u32 v{vGUr+2}, 0x20000, v{vGUr}
v_lshl_add_u32 v{c}, v{d}, 5, v{c}
v_lshl_add_u32 v{c}, v{b}, 7, v{c}
v_bfe_u32 v{d}, v{a}, 3, 1
v_lshl_add_u32 v{c}, v{d}, 6, v{c}
v_add_u32 v{vDnr}, s{sW8}, v{c}
v_xor_b32 v{vDnr+1}, 64, v{vDnr}
v_add_u32 v{vDnr+2}, 0x10000, v{vDnr}
v_add_u32 v{vDnr+3}, 0x10000, v{vDnr+1}
v_add_u32 v{vDnr+4}, 0x20000, v{vDnr}
v_add_u32 v{vDnr+5}, 0x20000, v{vDnr+1}
v_lshrrev_b32 v{b}, 3, v{a}
v_mul_u32_u24 v{b}, 896, v{b}
v_bfe_u32 v{c}, v{a}, 4, 1
v_lshlrev_b32 v{c}, 2, v{c}
v_and_b32 v{d}, 7, v{a}
v_xor_b32 v{c}, v{c}, v{d}
v_lshl_add_u32 v{vDn}, v{c}, 4, v{b}
v_lshrrev_b32 v{b}, 5, v{a}
v_lshlrev_b32 v{vGbo}, 4, v{b}
v_and_b32 v{c}, 31, v{a}
v_mul_u32_u24 v{c}, 896, v{c}
v_add_u32 v{vOo}, v{c}, v{vGbo}
s_lshr_b32 s{sA}, s{sQb}, 1
s_lshl_b32 s{sA}, s{sA}, 7
s_mul_i32 s{sB}, s{sW}, {448 * 896}
s_add_u32 s{sA}, s{sA}, s{sB}
{srd(sDn, KA + 16, f's{sA}', f's_sub_u32 s{sDn+2}, {1792 * 896}, s{sA}')}
{srd(sOut, KA + 22, None, 2048 * 896)}
s_mov_b32 s{sA}, 0x3f80
s_mov_b32 s{sB}, 0x3f800000""")
    PL([f"v_mov_b32 v{vAC + k}, 0" for k in range(16)])
    wait_flags("POLL1", 1, sRow)
    P('@STAMP@')
    for h in range(16):
        for p in range(2):
            E.item(Item(f"buffer_load_dwordx4 {vr(vPL + 8 * h + 4 * p, 4)}, v{vP1}, {sr(sWS,4)}, s{sPo} offen" + (" offset:1792" if p else "") + SC, vm_tag=('pl', h)))
        if h < 15: P(f"s_add_u32 s{sPo}, s{sPo}, {FRAGB}")
    for h in range(16):
        E.wait_vm((('pl', h),))
        PL([f"v_dot2c_f32_bf16 v{vAC + k}, s{sB if k % 2 else sA}, v{vPL + 8 * h + k // 2}" for k in range(16)])
    P('@STAMP@')
    P(f"s_mov_b32 s{sD}, 0xffff0000")
    xt = vPL
    for k in range(16):
        P(f"v_and_b32 v{xt + k}, s{sD}, v{vXr + k // 2}" if k % 2 else f"v_lshlrev_b32 v{xt + k}, 16, v{vXr + k // 2}")
    PL([f"v_fma_f32 v{vAC + k}, v{vAC + k}, v{vGA + k}, v{xt + k}" for k in range(16)])
    for p in range(2):
        for hf in range(2):
            E.item(Item(f"buffer_store_dwordx4 {vr(vAC + 8 * p + 4 * hf, 4)}, v{vX1s+p}, {sr(sWS,4)}, s{sX1s} offen" + (" offset:2048" if hf else "") + SC, vm_tag='x1'))
    def tree(src, dst):
        PL([f"v_add_f32 v{dst + k}, v{src + 2 * k}, v{src + 2 * k + 1}" for k in range(8)])
        for w in (4, 2, 1): PL([f"v_add_f32 v{dst + k}, v{dst + k}, v{dst + k + w}" for k in range(w)])
    def wave_red(r, t):
        P(f"s_nop 1\nv_add_f32_dpp v{r}, v{r}, v{r} row_ror:8 row_mask:0xf bank_mask:0xf")
        PL(xlane_multi("v_add_f32", [r], [t]))
    m = xt + 32; q = xt + 33; w0 = xt + 16
    tree(vAC, w0); wave_red(w0, w0 + 1)
    P(f"v_mul_f32 v{m}, {f2u(1 / 112)}, v{w0}")
    PL([f"v_sub_f32 v{xt + k}, v{vAC + k}, v{m}" for k in range(16)])
    PL([f"v_mul_f32 v{xt + k}, v{xt + k}, v{xt + k}" for k in range(16)])
    tree(xt, w0)
    P(f"v_mul_f32 v{q}, v{vMask}, v{w0}")
    wave_red(q, w0 + 1)
    P(f"ds_write_b64 v{vScrW}, {vr(m, 2)}\ns_waitcnt lgkmcnt(0)\ns_barrier")
    for w in range(4): P(f"ds_read_b64 {vr(w0 + 2 * w, 2)}, v{vScrR}" + (f" offset:{64 * w}" if w else ""))
    P(f"""s_waitcnt lgkmcnt(0)
v_add_f32 v{m}, v{w0}, v{w0+2}
v_add_f32 v{q}, v{w0+4}, v{w0+6}
v_add_f32 v{w0+1}, v{w0+1}, v{w0+3}
v_add_f32 v{m}, v{m}, v{q}
v_add_f32 v{w0+5}, v{w0+5}, v{w0+7}
v_mul_f32 v{m}, 0.25, v{m}
v_add_f32 v{w0+1}, v{w0+1}, v{w0+5}
v_sub_f32 v{w0}, v{w0}, v{m}
v_sub_f32 v{w0+2}, v{w0+2}, v{m}
v_sub_f32 v{w0+4}, v{w0+4}, v{m}
v_sub_f32 v{w0+6}, v{w0+6}, v{m}
v_mul_f32 v{q}, v{w0}, v{w0}
v_fma_f32 v{q}, v{w0+2}, v{w0+2}, v{q}
v_fma_f32 v{q}, v{w0+4}, v{w0+4}, v{q}
v_fma_f32 v{q}, v{w0+6}, v{w0+6}, v{q}
v_mul_f32 v{w0+1}, {f2u(1 / 448)}, v{w0+1}
v_fma_f32 v{q}, v{q}, 0.25, v{w0+1}
v_add_f32 v{q}, {f2u(1e-5)}, v{q}
v_rsq_f32 v{q}, v{q}""".replace("0.25", f"s{sA}").replace("s_waitcnt lgkmcnt(0)", f"s_mov_b32 s{sA}, {f2u(0.25)}\ns_waitcnt lgkmcnt(0)"))
    PL([f"v_sub_f32 v{xt + k}, v{vAC + k}, v{m}" for k in range(16)])
    PL([f"v_mul_f32 v{vB1 + k}, v{vB1 + k}, v{q}" for k in range(16)])
    PL([f"v_fma_f32 v{xt + k}, v{xt + k}, v{vB1 + k}, v{vB0 + k}" for k in range(16)])
    PL([f"v_cvt_pk_bf16_f32 v{w0 + k}, v{xt + 2 * k}, v{xt + 2 * k + 1}" for k in range(8)])
    for p in range(2):
        E.item(Item(f"buffer_store_dwordx4 {vr(w0 + 4 * p, 4)}, v{vP3}, {sr(sWS,4)}, s{sH2s} offen" + (" offset:3584" if p else "") + SC, vm_tag='h2s'))
    E.lds_done = len(E.lds)

    NM0 = opt.get('nm0', 4); LA = opt.get('la1', 28); CAP = opt.get('cap1', 6)
    order = [(t, ks) for ks in range(4 * NM0) for t in range(7)] + [(t, ks) for t in range(7) for ks in range(4 * NM0, 28)]
    N1 = len(order)
    S = Sched(N1, opt)
    def rd1(k):
        t, ks = order[k]; c = ks // 4; sl = GU_SLOT[c]; f = aR + 4 * (k % NR1)
        o = sl % 65536 + (32 * ((ks >> 1) & 1) + 8 * (ks & 1)) * 224 + 32 * t
        return [Item(f"ds_read_b64_tr_b16 {ar(f,2)}, v{vGUr + sl // 65536} offset:{o}", lds_tag=('g', k)),
                Item(f"ds_read_b64_tr_b16 {ar(f+2,2)}, v{vGUr + sl // 65536} offset:{o + 16 * 224}", lds_tag=('g', k))]
    lw = {}
    for k, (t, ks) in enumerate(order):
        acc = vr(vG + 16 * t, 16)
        S.mf[k] = f"{MF32} {acc}, {ar(aR + 4 * (k % NR1), 4)}, {ar(aH2 + 4 * ks, 4)}, {0 if ks == 0 else acc}"
        S.need[k] = (('g', k),); S.needvm[k] = (('h2', ks),); lw[t] = k
    first6 = min(k for k, (t, ks) in enumerate(order) if ks // 4 == 6)
    B6 = first6 - opt.get('b6', 8)
    pos = {}; prev = -1
    for k in range(28, N1):
        g = max(k - LA, prev + 1, B6 if k >= first6 else 0)
        assert g <= k - 4 and g >= k - NR1 + 1, (k, g)
        pos[k] = g; prev = g
    free_after = sorted(set(range(2, NM0)))
    DN_SLOT = [GU_SLOT[c] for c in free_after] + [GU_SLOT[c] for c in range(NM0, 7)]
    NE = len(free_after)
    DN_SLOT += DN_SLOT[:2]
    def dn_dma(j):
        its = []
        for q in range(8):
            pre = []
            if q % 4 == 0: pre.append(f"s_add_u32 m0, s{sW8}, {DN_SLOT[j] + (q // 4) * 4096}")
            imm = (q % 4) * 1024
            pre.append(f"s_mov_b32 s{sTmp}, {(64 * j + 8 * q) * 896 - imm}")
            its.append((pre, Item(f"buffer_load_dwordx4 v{vDn}, {sr(sDn,4)}, s{sTmp} offen" + (f" offset:{imm}" if imm else "") + " lds", vm_tag=('dn', j)), []))
        return its
    bars = {}
    for c in range(1, NM0):
        g = pos[28 * c + 27] + 3
        bars[g] = ([('g', 28 * c + 27)], [('gu', 5)] if c == 1 else [])
        put_dma(S, gu_dma(6) if c == 1 else dn_dma(c - 2), g + 3, 2)
    assert B6 not in bars and B6 > max(bars)
    bars[B6] = ([], [('gu', 6)])
    for g in bars: S.fixed[g].insert(0, ('BAR', g))
    for k in range(28, N1): S.fixed[pos[k]] += rd1(k)
    ca_ = -2 * math.log2(math.e) * math.sqrt(2 / math.pi)
    groups = []
    for t in range(7):
        g0 = vG + 16 * t; its = []
        for hf in range(2):
            r = [g0 + 4 * hf + e for e in range(4)]; T = [vGT + 8 * hf + e for e in range(4)]
            its += [f"v_mul_f32 v{T[e]}, v{r[e]}, v{r[e]}" for e in range(4)]
            its += [f"v_fma_f32 v{T[e]}, v{T[e]}, s{sA}, v{vGT + 4}" for e in range(4)]
            its += [f"v_mul_f32 v{T[e]}, v{T[e]}, v{r[e]}" for e in range(4)]
            for e in range(4): its += [Item(f"v_exp_f32 v{T[e]}, v{T[e]}", cost=2), f"v_mul_f32 v{r[e]}, v{r[e]}, v{r[e] + 8}"]
            its += [f"v_add_f32 v{T[e]}, 1.0, v{T[e]}" for e in range(4)]
            its += [Item(f"v_rcp_f32 v{T[e]}, v{T[e]}", cost=2) for e in range(4)]
            its += [f"v_mul_f32 v{r[e]}, v{r[e]}, v{T[e]}" for e in range(4)]
            its += [f"v_cvt_pk_bf16_f32 v{vHH + 4 * t + 2 * hf + e}, v{r[2 * e]}, v{r[2 * e + 1]}" for e in range(2)]
        if t == 4: its.append(f"s_add_u32 s{sB}, s{sB}, 4096")
        its.append(Item(f"buffer_store_dwordx4 {vr(vHH + 4 * t, 4)}, v{vLn}, {sr(sWS,4)}, s{sB} offen" + (f" offset:{1024 * (t % 4)}" if t % 4 else "") + SC, vm_tag='hh'))
        groups.append((lw[t] + 4, its))
    S.stream(groups, CAP)
    E.time = -100
    for k in range(28):
        for it in rd1(k): E.item(it)
    P(f"""s_lshl_b32 s{sD}, s{sQb}, 2
s_add_u32 s{sD}, s{sD}, s{sW}
s_mul_i32 s{sB}, s{sD}, 114688
s_mul_i32 s{sA}, s{sHead}, 7168
s_add_u32 s{sB}, s{sB}, s{sA}
s_add_u32 s{sB}, s{sB}, {WS_HH}
s_mul_i32 s{sD}, s{sD}, 28672
s_add_u32 s{sD}, s{sD}, {WS_H2}
s_mov_b32 s{sA}, {f2u(ca_ * 0.044715)}
v_mov_b32 v{vGT + 4}, {f2u(ca_)}""")
    E.wait_both(('h2s',))
    P("s_barrier")
    flag(2)
    P('@STAMP@')
    dma_now(gu_dma(5))
    wait_flags("POLL2", 2, sRow)
    P('@STAMP@')
    for ks in range(28):
        if ks % 4 == 0 and ks: P(f"s_add_u32 s{sD}, s{sD}, 4096")
        E.item(Item(f"buffer_load_dwordx4 {ar(aH2 + 4 * ks, 4)}, v{vLn}, {sr(sWS,4)}, s{sD} offen" + (f" offset:{1024 * (ks % 4)}" if ks % 4 else "") + SC, vm_tag=('h2', ks)))
    def bar1(E, it):
        l, v = bars[it[1]]
        if l: E.wait_lds(l)
        if v: E.wait_vm(v)
    pre = E.out; E.out = []
    sg = S.emit(E, 10 ** 6, opt.get('minage1', 3), bar1)
    E.out = pre + sg[0]
    P('@STAMP@')

    def rd2(k):
        ks, nt = k // 2, k % 2; sl = DN_SLOT[ks // 4]; f = vR2 + 4 * (k % NR2)
        o = sl % 65536 + (ks % 4) * 2048; bs = vDnr + 2 * (sl // 65536) + nt
        return [Item(f"ds_read_b64_tr_b16 {vr(f,2)}, v{bs} offset:{o}", lds_tag=('d', k), need_vm=(('dn', ks // 4),)),
                Item(f"ds_read_b64_tr_b16 {vr(f+2,2)}, v{bs} offset:{o + 1024}", lds_tag=('d', k))]
    E.wait_vm(('hh',))
    P("s_barrier")
    flag(3)
    P('@STAMP@')
    P(f"s_cmp_ge_u32 s{sQb}, 14\ns_cbranch_scc1 K_FIN")
    E.time = -100
    for k in range(8 * NE):
        for it in rd2(k): E.item(it)
    for j in range(NE, 5): dma_now(dn_dma(j))
    for k in range(8 * NE, 16):
        for it in rd2(k): E.item(it)
    sH0 = sPart; sH1 = sXo; sXl = sCnt; sOs = sThr
    P(f"""s_and_b32 s{sA}, s{sQb}, 1
s_lshl_b32 s{sA}, s{sA}, 1
s_lshl_b32 s{sB}, s{sHead}, 2
s_add_u32 s{sA}, s{sA}, s{sB}
s_mul_i32 s{sH0}, s{sA}, 114688
s_mul_i32 s{sB}, s{sW}, 28672
s_add_u32 s{sH0}, s{sH0}, s{sB}
s_add_u32 s{sH0}, s{sH0}, {WS_HH}
s_add_u32 s{sH1}, s{sH0}, 114688
s_lshr_b32 s{sB}, s{sW}, 1
s_add_u32 s{sA}, s{sA}, s{sB}
s_and_b32 s{sB}, s{sQb}, 14
s_and_b32 s{sD}, s{sW}, 1
s_add_u32 s{sB}, s{sB}, s{sD}
s_mul_i32 s{sXl}, s{sA}, 57344
s_lshl_b32 s{sD}, s{sB}, 12
s_add_u32 s{sXl}, s{sXl}, s{sD}
s_add_u32 s{sXl}, s{sXl}, {WS_X1}
s_mul_i32 s{sOs}, s{sA}, {32 * 896}
s_lshl_b32 s{sD}, s{sB}, 6
s_add_u32 s{sOs}, s{sOs}, s{sD}
s_lshl_b32 s{sD}, s{sB}, 7
s_add_u32 s{sD}, s{sD}, {WS_GB}""")
    for q in range(4): E.item(Item(f"buffer_load_dwordx4 {vr(vGB + 4 * q, 4)}, v{vGbo}, {sr(sWS,4)}, s{sD} offen" + (f" offset:{32 * q}" if q else "") + SC, vm_tag='gb'))
    E.wait_lds((('d', 15),))
    for j in range(5, 7): dma_now(dn_dma(j))
    wait_flags("POLL3", 3, sRow3)
    P('@STAMP@')
    for ks in range(28):
        if ks % 4 == 0 and ks: P(f"s_add_u32 s{sH0}, s{sH0}, 4096\ns_add_u32 s{sH1}, s{sH1}, 4096")
        for tt in range(2):
            E.item(Item(f"buffer_load_dwordx4 {ar(aHB + 8 * ks + 4 * tt, 4)}, v{vLn}, {sr(sWS,4)}, s{sH1 if tt else sH0} offen" + (f" offset:{1024 * (ks % 4)}" if ks % 4 else "") + SC, vm_tag=('hb', ks, tt)))
    for q in range(4): E.item(Item(f"buffer_load_dwordx4 {vr(vX1 + 4 * q, 4)}, v{vLn}, {sr(sWS,4)}, s{sXl} offen" + (f" offset:{1024 * q}" if q else "") + SC, vm_tag='x1l'))
    S = Sched(112, opt)
    for ks in range(28):
        for tt in range(2):
            for nt in range(2):
                n = 4 * ks + 2 * tt + nt; k = 2 * ks + nt
                acc = vr(vD + 16 * (2 * tt + nt), 16)
                S.mf[n] = f"{MF32} {acc}, {vr(vR2 + 4 * (k % NR2), 4)}, {ar(aHB + 8 * ks + 4 * tt, 4)}, {0 if ks == 0 else acc}"
                S.need[n] = (('d', k),); S.needvm[n] = (('hb', ks, tt),)
    for k in range(16, 56):
        g = 2 * (k - 16)
        assert k < NR2 or g > 4 * ((k - NR2) // 2) + 3
        S.fixed[g] += rd2(k)
    pre = E.out; E.out = []
    sg = S.emit(E, 10 ** 6, 3, None)
    E.out = pre + sg[0]
    P('@STAMP@')
    P(f"""v_add_u32 v{vRW}, s{sW8}, v{vLn}
v_add_u32 v{vRW}, 0x10000, v{vRW}
s_and_b32 s{sA}, s{sW}, 1
s_lshl_b32 s{sA}, s{sA}, 12
s_lshr_b32 s{sB}, s{sW}, 1
s_lshl_b32 s{sB}, s{sB}, 15
s_add_u32 s{sA}, s{sA}, s{sB}
s_add_u32 s{sA}, s{sA}, 0x10000
v_add_u32 v{vRR}, s{sA}, v{vLn}
s_nop 7""")
    for i in range(4):
        for q in range(4): P(f"ds_write_b128 v{vRW}, {vr(vD + 16 * i + 4 * q, 4)} offset:{(i & 1) * 4096 + (i >> 1) * 32768 + 1024 * q}")
    P("s_waitcnt lgkmcnt(0)\ns_barrier")
    for w in range(4):
        for q in range(4): P(f"ds_read_b128 {vr(vD + 16 * w + 4 * q, 4)}, v{vRR} offset:{w * 8192 + 1024 * q}")
    P("s_waitcnt vmcnt(0) lgkmcnt(8)")
    PL([f"v_add_f32 v{vD + k}, v{vD + k}, v{vD + 16 + k}" for k in range(16)])
    P("s_waitcnt lgkmcnt(0)")
    PL([f"v_add_f32 v{vD + 32 + k}, v{vD + 32 + k}, v{vD + 48 + k}" for k in range(16)])
    PL([f"v_add_f32 v{vD + k}, v{vD + k}, v{vD + 32 + k}" for k in range(16)])
    PL([f"v_fma_f32 v{vD + k}, v{vD + k}, v{vGB + k}, v{vX1 + k}" for k in range(16)])
    PL([f"v_cvt_pk_bf16_f32 v{vD + 16 + k}, v{vD + 2 * k}, v{vD + 2 * k + 1}" for k in range(8)])
    P("s_nop 1")
    for z in range(2):
        for e in range(2): P(f"v_permlane32_swap_b32 v{vD + 16 + 4 * z + e}, v{vD + 18 + 4 * z + e}")
    for z in range(2): P(f"buffer_store_dwordx4 {vr(vD + 16 + 4 * z, 4)}, v{vOo}, {sr(sOut,4)}, s{sOs} offen" + (" offset:32" if z else ""))
    out = E.out; E.out = []
    return out
```

```python
import sys, json
from asmlib import *
import fused
NAME = "adaLN_cond__mha_block_cached__glu_gated_geglu__prompt_kernel"
def build(opt):
    body, errs, info = fused.gen(opt)
    for e in errs[:30]: print(e)
    print(info, len(body), 'lines')
    assert not errs
    return (f"; @launch grid=(256,1,1) block=(256,1,1) lds={fused.LDS_TOT}\n" + '.amdgcn_target "amdgcn-amd-amdhsa--gfx950"\n' + kernel_text(NAME, body)
            + KD.format(name=NAME, vgpr=512, sgpr=102, acc=256))
if __name__ == '__main__':
    opt = json.loads(sys.argv[2]) if len(sys.argv) > 2 else {}
    open(sys.argv[1], 'w').write(build(opt))
```

```python
from asmlib import *
import math, re as _re

WS_MOD  = 0
WS_GA = 4096; WS_B0 = 4096 + 1792; WS_B1 = 4096 + 3584; WS_GB = 4096 + 5376
WS_FLAG = 16384
FRAGB   = 128 * 14 * 1024
WS_H2   = 1 << 20
WS_X1   = WS_H2 + (2 << 20)
WS_HH   = WS_X1 + (4 << 20)
WS_PART = WS_HH + (8 << 20)
WS_END  = WS_PART + 16 * FRAGB
WS_SIZE = 268435456
OOB = 0x40000000

SLOT = [0, 65536, 32768, 98304]
LDS_MOD = 131072
LDS_SCR = 131072 + 8192
LDS_LN  = 131072 + 29184
LDS_TOT = 163840

vK = 1; vV = 5; vDK = 13; vDV = 21; vL = 29; vPS = 31; vTM = 33; vSTMP = 39; vT = 40; vNEG = 48; vGU = 56; vFst = 63; vQ = 64
vS = [128, 160]; vP = [192, 208]
vHB = 32; vMV = 64; vFT = 100; vDW = 108; vMod = 112; vX = 113; vWlo = 120; vXN = 128; vWhi = 240; vQT = 40
vOB = 64; vOA = [128, 160]; vST = [192, 208]; vWoA = 224; vDWo = 232; vL16 = 233; vRL = 236; vOT = 240
aO = 0; aQA = 0; aF = 128
sK = 4; sV = 8; sWq = 12; sWo = 16; sWS = 20; sW8 = 24; sKo = 25; sVo = 26; sCnt = 27; sThr = 28; sTmp = 29; sRet = 30; sPart = 32; sXo = 33
sGUl = 34; sT2 = 35
sX = 36; sDbg = 40; sGU = 44; sWm = 48; sC = 52; sW = 56; sHead = 57; sQb = 58; sA = 59; sB = 60; sD = 61; sE = 62; sF = 63
sDn = 12; sOut = 48
KA = 64
sRot = [92, 93, 94, 95, 100, 101, 35]

MF = "v_mfma_f32_16x16x32_bf16"
MF32 = "v_mfma_f32_32x32x16_bf16"
THR_LOG2 = 64
G = 64
POLLMAX = 1 << 14
def f2u(x):
    import struct
    return hex(struct.unpack('<I', struct.pack('<f', x))[0])

class Sched:
    def __init__(self, NG, opt):
        self.NG = NG
        self.mf = [None] * NG
        self.need = [()] * NG
        self.needvm = [()] * NG
        self.fixed = [[] for _ in range(NG + 1)]
        self.valu = [[] for _ in range(NG + 1)]
        self.post = [[] for _ in range(NG + 1)]
        self.free_nv = opt.get('free_nv', 0)
    def cost(self, g):
        c = sum((2 if isinstance(x, tuple) else x.cost) for x in self.fixed[g])
        c = max(0, c - self.free_nv)
        return c + sum(x.cost for x in self.valu[g]) + sum(x.cost for x in self.post[g])
    def spread(self, items, g0, g1):
        items = [Item(x) if isinstance(x, str) else x for x in items]
        tot = sum(x.cost for x in items)
        base = [self.cost(g) for g in range(g0, g1 + 1)]
        lo, hi = 0.0, 1000.0
        for _ in range(50):
            m = (lo + hi) / 2
            if sum(max(0, m - b) for b in base) >= tot: hi = m
            else: lo = m
        cum = 0.0; done = 0.0; k = 0
        for g in range(g0, g1 + 1):
            cum += max(0, hi - base[g - g0])
            while k < len(items) and (done + items[k].cost / 2 <= cum + 1e-6 or g == g1):
                self.valu[g].append(items[k]); done += items[k].cost; k += 1
        assert k == len(items)
    def stream(self, groups, cap):
        g = 0
        for e, items in groups:
            g = max(g, min(e, self.NG))
            for it in items:
                it = Item(it) if isinstance(it, str) else it
                while g < self.NG and self.cost(g) + it.cost > cap + (0.5 if it.cost > 1 else 0): g += 1
                self.valu[g].append(it)
    def place_reads(self, g0, reads, first_use, rd_last, dist):
        flat = [(it, first_use[f]) for f, r in enumerate(reads) for it in r]
        n = len(flat)
        pos = [min(g0 + (k * (rd_last + 1)) // n, flat[k][1] - dist) for k in range(n)]
        for k in range(n - 2, -1, -1):
            pos[k] = min(pos[k], pos[k + 1])
            if k + 2 < n and pos[k] == pos[k + 2]: pos[k] -= 1
        for k in range(n):
            self.fixed[max(pos[k], g0)].append(flat[k][0])
    def emit(self, E, G, minage, bar):
        segs = []
        for n in range(self.NG + 1):
            if n % G == 0 and n:
                segs.append(E.out); E.out = []
            E.time = n
            if n < self.NG and self.mf[n] is not None:
                E.wait_lds(self.need[n], minage)
                if self.needvm[n]: E.wait_vm(self.needvm[n])
                E.raw(self.mf[n])
            for it in self.fixed[n]:
                if isinstance(it, tuple):
                    bar(E, it)
                    if len(E.out) >= 2 and E.out[-1].startswith('s_waitcnt vm') and E.out[-2].startswith('s_waitcnt lgkm'):
                        a = E.out.pop(); b = E.out.pop(); E.raw(a + ' ' + b.split()[1])
                    E.raw("s_barrier")
                else:
                    if it.text.endswith('lds') and E.out and ' m0,' in E.out[-1]: E.raw('s_nop 0')
                    E.item(it)
            for it in self.valu[n] + self.post[n]: E.item(it, minage)
        segs.append(E.out); E.out = []
        return segs

def xlane_reduce(op, a, t):
    return [Item(f"v_mov_b32 v{t}, v{a}"), Item("s_nop 1", cost=2), Item(f"v_permlane32_swap_b32 v{a}, v{t}"), Item(f"{op} v{a}, v{a}, v{t}"),
            Item(f"v_mov_b32 v{t}, v{a}"), Item("s_nop 1", cost=2), Item(f"v_permlane16_swap_b32 v{a}, v{t}"), Item(f"{op} v{a}, v{a}, v{t}")]
def xlane_multi(op, regs, tmps):
    r = []
    for sw in ('32', '16'):
        r += [f"v_mov_b32 v{t}, v{a}" for a, t in zip(regs, tmps)] + ["s_nop 1"]
        r += [f"v_permlane{sw}_swap_b32 v{a}, v{t}" for a, t in zip(regs, tmps)]
        r += [f"{op} v{a}, v{a}, v{t}" for a, t in zip(regs, tmps)]
    return r
def srd(d, plo, off, size):
    if off is None: r = [f"s_mov_b32 s{d}, s{plo}", f"s_mov_b32 s{d+1}, s{plo+1}"]
    else: r = [f"s_add_u32 s{d}, s{plo}, {off}", f"s_addc_u32 s{d+1}, s{plo+1}, 0"]
    r.append(size if isinstance(size, str) else f"s_mov_b32 s{d+2}, {size}")
    r.append(f"s_mov_b32 s{d+3}, 0x20000")
    return "\n".join(r)

def gen(opt=None):
    opt = opt or {}
    SH = opt.get('shift', 12)
    RD_LAST = opt.get('rd_last', 55)
    MINAGE = opt.get('minage', 6)
    DIST = opt.get('dist', 10)
    NPRE = opt.get('npre', 4)
    SC = ' sc1'
    NPH = 78
    NG = NPH * G + SH
    S_ = Sched(NG, opt)
    mf = S_.mf; fixed = S_.fixed; valu = S_.valu; post = S_.post; spread = S_.spread
    stamps = opt.get('stamps')
    nst = [0]; streg = [255]
    def stamp_lines():
        if stamps is None: return []
        k = nst[0]; nst[0] += 1
        return ["s_memtime s[96:97]", "s_memrealtime s[98:99]", "s_waitcnt lgkmcnt(0)", f"v_writelane_b32 v{streg[0]}, s96, {2 * k}", f"v_writelane_b32 v{streg[0]}, s98, {2 * k + 1}"]

    def phase_kind(j):
        if j < 7: return ('W', j)
        if j == 7: return ('K', 0)
        if j <= 69: return ('K', (j - 6) // 2) if j % 2 == 0 else ('V', (j - 9) // 2)
        if j == 70: return ('V', 31)
        return ('O', j - 71)
    def slot_of(j):
        if j <= 69: return j % 4
        return {70: 3, 71: 2, 72: 0, 73: 1, 74: 3, 75: 2, 76: 0, 77: 1}[j]
    def dma_seg(j):
        if j < 4: return None
        if j <= 69: return j - 3
        return {70: 68, 71: 67, 72: 69, 73: 70, 74: 71, 75: 72, 76: 73, 77: 74}[j]
    N0 = lambda j: G * j + SH
    dmod = opt.get('dma_mod', '')

    def dma_items(j):
        kind, t = phase_kind(j); sl = SLOT[slot_of(j)]
        its = []
        for q in range(8):
            pre = []
            if q % 4 == 0: pre.append(f"s_add_u32 m0, s{sW8}, {sl + (q // 4) * 4096}")
            imm = (q % 4) * 1024
            off = f" offset:{imm}" if imm else ""
            if kind == 'K':
                ld = f"buffer_load_dwordx4 v{vDK + q}, {sr(sK,4)}, s{sKo} offen{off}{dmod} lds"
            elif kind == 'V':
                ld = f"buffer_load_dwordx4 v{vDV + q}, {sr(sV,4)}, s{sVo} offen{off}{dmod} lds"
            elif kind == 'W':
                pre.append(f"s_add_u32 s{sTmp}, s{sRot[t]}, {2 * q * 8192 - imm}" if q else f"s_mov_b32 s{sTmp}, s{sRot[t]}")
                ld = f"buffer_load_dwordx4 v{vDW + (q & 1) + 2 * (q >> 2)}, {sr(sWq,4)}, s{sTmp} offen{off} lds"
            else:
                pre.append(f"s_mov_b32 s{sTmp}, {8 * q * 896 + (0 if opt.get('wo_same') else 128 * t) - imm}")
                ld = f"buffer_load_dwordx4 v{vDWo}, {sr(sWo,4)}, s{sTmp} offen{off} lds"
            aft = []
            if q == 7 and kind == 'K': aft.append(f"s_add_u32 s{sKo}, s{sKo}, 32768")
            if q == 7 and kind == 'V': aft.append(f"s_add_u32 s{sVo}, s{sVo}, 32768")
            its.append((pre, Item(ld, vm_tag=('tile', j), cost=opt.get('dma_cost', 1)), aft))
        return its
    GU_SLOT = [131072, 98304, 32768, 0, 65536, 131072, 98304]
    def gu_dma(c):
        its = []
        for q in range(7):
            pre = []
            if q == 0: pre.append(f"s_mov_b32 s{sTmp}, {(0 if opt.get('gu_same') else c) * 64 * 3584}")
            if q % 4 == 0: pre.append(f"s_add_u32 m0, s{sGUl}, {GU_SLOT[c] + (q // 4) * 4096}")
            imm = (q % 4) * 1024
            off = f" offset:{imm}" if imm else ""
            its.append((pre, Item(f"buffer_load_dwordx4 v{vGU + q}, {sr(sGU,4)}, s{sTmp} offen{off} lds", vm_tag=('gu', c)), []))
        return its

    Qr = lambda s, qh: vQ + 8 * s + 4 * qh
    Sr = lambda b, kb, qh: vS[b] + (2 * kb + qh) * 4
    Pr = lambda b, qh, ks: vP[b] + 8 * qh + 4 * ks
    last_write = {}
    first_read = {}
    for j in range(NPH):
        kind, t = phase_kind(j); sl = SLOT[slot_of(j)]
        if kind in 'WV': order = [((dt, ks), qh) for dt in range(16) for qh in range(2) for ks in range(2)]
        elif kind == 'K': order = [((kb, s), qh) for kb in range(4) for qh in range(2) for s in range(8)]
        else:
            if t == 0: order = [((nt, ks), qh) for ks in range(8) for nt in range(4) for qh in range(2)]
            else: order = [((nt, ks), qh) for nt in range(4) for qh in range(2) for ks in range(8)]
        fidx = {}; reads = []; first = []
        started = set()
        for p, (key, qh) in enumerate(order):
            n = N0(j) + p
            if key not in fidx:
                fi = len(fidx); fidx[key] = fi; f = aF + 4 * fi; tag = ('f', j, fi)
                if kind in 'WV':
                    dt, ks = key
                    base = (vV if kind == 'V' else vWlo if sl < 65536 else vWhi) + (dt & 7)
                    assert kind == 'W' or sl >= 65536
                    o = (sl % 65536) + 32 * ks * 512 + (dt >> 3) * 256
                    rd = [f"ds_read_b64_tr_b16 {ar(f,2)}, v{base} offset:{o}", f"ds_read_b64_tr_b16 {ar(f+2,2)}, v{base} offset:{o + (16 if kind == 'V' else 4) * 512}"]
                elif kind == 'K':
                    kb, s = key
                    o = (0 if t == 0 else sl) + kb * 8192 + (s >> 2) * 256
                    rd = [f"ds_read_b128 {ar(f,4)}, v{vK + (s & 3)} offset:{o}"]
                else:
                    nt, ks = key
                    base = vWoA + nt + (4 if sl >= 65536 else 0)
                    o = (sl % 65536) + 32 * ks * 128
                    rd = [f"ds_read_b64_tr_b16 {ar(f,2)}, v{base} offset:{o}", f"ds_read_b64_tr_b16 {ar(f+2,2)}, v{base} offset:{o + 16 * 128}"]
                reads.append([Item(x, lds_tag=tag) for x in rd]); first.append(n)
            fi = fidx[key]; f = aF + 4 * fi
            accname = (key[0], qh)
            isfirst = accname not in started; started.add(accname)
            if kind == 'W':
                dt, ks = key
                acc = ar(aQA + 8 * dt + 4 * qh, 4)
                mf[n] = f"{MF} {acc}, {ar(f,4)}, {vr(vHB + 16 * (t % 2) + 8 * qh + 4 * ks, 4)}, {0 if (t == 0 and isfirst) else acc}"
            elif kind == 'K':
                kb, s = key
                acc = vr(Sr(t % 2, kb, qh), 4)
                c = acc if not isfirst else (0 if t < 2 else vr(vNEG + 4 * qh, 4))
                mf[n] = f"{MF} {acc}, {ar(f,4)}, {vr(Qr(s, qh), 4)}, {c}"
                first_read.setdefault((j, s, qh), n)
            elif kind == 'V':
                dt, ks = key
                acc = ar(aO + 8 * dt + 4 * qh, 4)
                mf[n] = f"{MF} {acc}, {ar(f,4)}, {vr(Pr(t % 2, qh, ks), 4)}, {0 if (t == 0 and isfirst) else acc}"
            else:
                nt, ks = key
                acc = vr(vOA[t % 2] + 8 * nt + 4 * qh, 4)
                mf[n] = f"{MF} {acc}, {ar(f,4)}, {vr(vOB + 8 * ks + 4 * qh, 4)}, {0 if isfirst else acc}"
                first_read.setdefault((j, ks, qh), n)
            last_write[(j,) + accname] = n
            S_.need[n] = (('f', j, fi),)
        fixed[G * j].append(('BAR', j))
        S_.place_reads(G * j, reads, first, RD_LAST, DIST)
    DMA0 = opt.get('dma0', 5); DMAST = opt.get('dma_step', 7)
    def put_dma(S, its, g0, step):
        for q, (pre, it, aft) in enumerate(its):
            g = g0 + q * step
            for k, x in enumerate(pre): S.fixed[g - len(pre) + k].append(Item(x))
            S.fixed[g].append(it)
            for x in aft: S.fixed[g + 1].append(Item(x))
    for j in range(4, NPH): put_dma(S_, dma_items(j), G * dma_seg(j) + DMA0, DMAST)
    put_dma(S_, gu_dma(0) + gu_dma(1), G * 75 + 4, 4)
    put_dma(S_, gu_dma(2), G * 76 + DMA0, DMAST)
    put_dma(S_, gu_dma(3), G * 77 + DMA0, 5)

    HZ = 4
    def mod_reads(c):
        return [Item(f"ds_read_b128 {vr(vMV + 16 * ks + 4 * q, 4)}, v{vMod} offset:{(2 * c + ks) * 128 + 16 * (q & 1) + (3584 if q < 2 else 0)}", lds_tag=('m', c, ks)) for ks in range(2) for q in range(4)]
    def h_items(c):
        its = []
        for ks in range(2):
            mv = vMV + 16 * ks
            for qh in range(2):
                hb = vHB + 16 * (c % 2) + 8 * qh + 4 * ks
                xr = vXN + 4 * (qh * 14 + 2 * c + ks)
                for e in range(8):
                    its.append(Item(f"v_fma_mix_f32 v{vFT + e}, v{xr + e // 2}, v{mv + e}, v{mv + 8 + e} op_sel:[{e % 2},0,0] op_sel_hi:[1,0,0]", need_lds=((('m', c, ks),) if e == 0 else ())))
                its += [Item(f"v_cvt_pk_bf16_f32 v{hb + q}, v{vFT + 2 * q}, v{vFT + 2 * q + 1}") for q in range(4)]
        return its
    fixed[0][1:1] = mod_reads(0)
    spread(h_items(0), 1, SH - 2)
    for c in range(1, 7):
        for q, it in enumerate(mod_reads(c)): fixed[N0(c - 1) + q].append(it)
        spread(h_items(c), N0(c - 1) + 9, N0(c) - 3)
    for s in range(8):
        for qh in range(2):
            q = Qr(s, qh); a0 = aQA + 8 * (2 * s) + 4 * qh; tb = 48 + 8 * qh
            its = [f"v_accvgpr_read_b32 v{tb + 4 * u + e}, a{a0 + 8 * u + e}" for u in range(2) for e in range(4)]
            its += [f"v_cvt_pk_bf16_f32 v{q}, v{tb}, v{tb + 1}", f"v_cvt_pk_bf16_f32 v{q + 2}, v{tb + 4}, v{tb + 5}",
                   f"v_cvt_pk_bf16_f32 v{q + 1}, v{tb + 2}, v{tb + 3}", f"v_cvt_pk_bf16_f32 v{q + 3}, v{tb + 6}, v{tb + 7}", "s_nop 0",
                   f"v_permlane32_swap_b32 v{q}, v{q + 2}", f"v_permlane32_swap_b32 v{q + 1}, v{q + 3}", "s_nop 0",
                   f"v_permlane16_swap_b32 v{q}, v{q + 2}", f"v_permlane16_swap_b32 v{q + 1}, v{q + 3}"]
            lo = last_write[(6, 2 * s + 1, 1)] + HZ + 4 * qh
            hi = min(lo + 3, first_read[(7, s, qh)] - 3)
            assert hi >= lo, (s, qh, lo, hi)
            spread(its, lo, hi)
    spread([f"v_subrev_u32 v{vK + q}, {SLOT[3]}, v{vK + q}" for q in range(4)], G * 7 + RD_LAST + 1, G * 8 - 1)

    def sm_items(b, sub=False):
        pairs = [(kb, qh, h) for kb in range(4) for qh in range(2) for h in range(2)]
        def ex(k):
            kb, qh, h = pairs[k]; s = Sr(b, kb, qh) + 2 * h
            r = []
            if sub: r += [Item(f"v_add_f32 v{s + e}, v{vNEG + 4 * qh}, v{s + e}") for e in range(2)]
            r += [Item(f"v_exp_f32 v{vT + 2 * (k % 4) + e}, v{s + e}", cost=2) for e in range(2)]
            return r
        def fin(k):
            kb, qh, h = pairs[k]; a = vT + 2 * (k % 4); ps = vPS + qh
            cv = Item(f"v_cvt_pk_bf16_f32 v{Pr(b, qh, kb // 2) + 2 * (kb % 2) + h}, v{a}, v{a + 1}")
            if kb == 0 and h == 0: return [Item(f"v_add_f32 v{ps}, v{a}, v{a + 1}"), cv]
            return [Item(f"v_add_f32 v{ps}, v{a}, v{ps}"), cv, Item(f"v_add_f32 v{ps}, v{a + 1}, v{ps}")]
        seq = ex(0)
        for k in range(1, 16):
            e = ex(k); f = fin(k - 1)
            seq += e[:-1] + f[:1] + e[-1:] + f[1:]
        seq += fin(15)
        return seq
    def max_items(b, kbs, dst, init):
        its = []
        for qh in range(2):
            regs = [Sr(b, kb, qh) + r for kb in kbs for r in range(4)]
            d = dst + qh
            if init:
                its.append(Item(f"v_max3_f32 v{d}, v{regs[0]}, v{regs[1]}, v{regs[2]}")); regs = regs[3:]
            while len(regs) >= 2:
                its.append(Item(f"v_max3_f32 v{d}, v{d}, v{regs[0]}, v{regs[1]}")); regs = regs[2:]
            if regs: its.append(Item(f"v_max_f32 v{d}, v{d}, v{regs[0]}"))
        return its
    jK = lambda t: 7 if t == 0 else 2 * t + 6
    jV = lambda t: 70 if t == 31 else 2 * t + 9

    o0 = vOT
    ep_addr = [
        f"v_and_b32 v{o0}, 63, v0",
        f"v_lshlrev_b32 v{vL16}, 4, v{o0}",
        f"v_add_u32 v{vL16+1}, {14 * 1024}, v{vL16}",
        f"v_lshrrev_b32 v{o0+1}, 3, v{o0}",
        f"v_lshrrev_b32 v{o0+2}, 6, v0",
        f"v_lshl_add_u32 v{o0+1}, v{o0+2}, 6, v{o0+1}",
        f"v_mul_u32_u24 v{o0+1}, 896, v{o0+1}",
        f"v_lshrrev_b32 v{o0+2}, 3, v{o0}",
        f"v_and_b32 v{o0+2}, 6, v{o0+2}",
        f"v_and_b32 v{o0+3}, 7, v{o0}",
        f"v_xor_b32 v{o0+2}, v{o0+2}, v{o0+3}",
        f"v_lshl_add_u32 v{vDWo}, v{o0+2}, 4, v{o0+1}",
        f"v_lshrrev_b32 v{o0+1}, 2, v{o0}",
        f"v_lshlrev_b32 v{o0+1}, 7, v{o0+1}",
        f"v_bfe_u32 v{o0+2}, v{o0}, 3, 2",
        f"v_lshl_add_u32 v{o0+1}, v{o0+2}, 5, v{o0+1}",
        f"v_and_b32 v{o0+2}, 3, v{o0}",
        f"v_lshl_add_u32 v{vWoA}, v{o0+2}, 3, v{o0+1}",
    ] + [f"v_xor_b32 v{vWoA+q}, {32 * q}, v{vWoA}" for q in range(1, 4)] + [f"v_add_u32 v{vWoA+4+q}, 0x10000, v{vWoA+q}" for q in range(4)]
    for q in range(7):
        ep_addr += [f"v_add_u32 v{o0+1}, {64 * q}, v{o0}", f"v_mul_u32_u24 v{o0+1}, 4682, v{o0+1}", f"v_lshrrev_b32 v{o0+1}, 16, v{o0+1}",
                    f"v_mul_u32_u24 v{o0+1}, 3360, v{o0+1}", f"v_add3_u32 v{vGU+q}, v{o0+1}, v{vL16}, {'s%d' % sE if q >= 4 else 0}"]
    ep_addr.insert(0, f"s_mov_b32 s{sE}, 4096")
    ep_addr += [f"v_mov_b32 v{o0+1}, {OOB}", "v_cmp_eq_u32 vcc, 0, v0", f"v_mov_b32 v{o0+2}, 0", f"v_mov_b32 v{o0+3}, 1",
                f"v_cndmask_b32 v{vFst}, v{o0+1}, v{o0+2}, vcc"]
    spread(ep_addr, N0(7) + 16, N0(7) + 50)
    fixed[N0(8) + 2].append(Item(f"buffer_store_dword v{o0+2}, v{vFst}, {sr(sWS,4)}, s{sF} offen{SC}", vm_tag='fz'))
    fixed[G * 11 + 2].append(Item(f"s_and_b32 s{sE}, s2, 15\ns_lshl_b32 s{sE}, s{sE}, 2", cost=2))
    fixed[G * 11 + 3].append(Item(f"buffer_atomic_add v{o0+3}, v{vFst}, {sr(sDbg,4)}, s{sE} offen offset:128{SC}", need_vm=('fz',)))
    chk = [f"v_min_u32 v{o0}, 16, v0", f"v_mov_b32 v{o0+1}, 56", f"v_cmp_gt_u32 vcc, 16, v0", f"v_lshlrev_b32 v{o0}, 2, v{o0}", f"v_mov_b32 v{o0+2}, {OOB}",
           f"v_cndmask_b32 v{o0+1}, v{o0+1}, 16, vcc", "v_cmp_gt_u32 vcc, 64, v0", "s_nop 1",
           f"v_cndmask_b32 v{o0}, v{o0+2}, v{o0}, vcc", f"v_cndmask_b32 v{o0+1}, 0, v{o0+1}, vcc"]
    CH0 = N0(65) + 4
    for k, x in enumerate(chk): fixed[CH0 + k].append(Item(x))
    CHKLD = f"buffer_load_dword v{o0+2}, v{o0}, {sr(sDbg,4)}, 0 offen offset:128{SC}"
    fixed[CH0 + len(chk) + 1].append(Item(CHKLD, vm_tag='chk'))
    fixed[N0(69) + 4].append(Item(f"v_cmp_ne_u32 vcc, v{o0+1}, v{o0+2}", need_vm=('chk',)))
    fixed[N0(69) + 6].append(Item("s_cbranch_vccnz CHK_SLOW\nCHK_BACK:"))

    MAP = opt.get('map', 1)
    NTE = opt.get('nte', 6)
    if NTE:
        vTa = 244; vTd = 247; u = 248; NID = 128 >> MAP; T0 = 13 - NTE
        LW = -(-1792 // (NTE * NID)); RW = -(-448 // (NTE * NID // 2)); LD = -(-12544 // (NTE * 1024))
        BLK = [NID * LW * 128, RW * (NID // 2) * 3584, 1024 * LD * 128]
        def oob(d, n): return [f"v_sub_u32 v{u+1}, {n - 1}, v{u}", f"v_and_b32 v{u+1}, {OOB}, v{u+1}", f"v_add_u32 v{d}, v{d}, v{u+1}"]
        ta = [f"v_and_b32 v{u}, 63, v0",
              f"s_and_b32 s{sA}, s{sQb}, {(32 >> MAP) - 1}", f"s_lshl2_add_u32 s{sB}, s{sA}, s{sW}", f"s_mul_i32 s{sB}, s{sB}, {LW * 128}", f"s_sub_u32 s{sB}, s{sB}, {T0 * BLK[0]}",
              f"v_lshl_add_u32 v{vTa}, v{u}, 7, s{sB}"] + oob(vTa, LW)
        ta += [f"s_and_b32 s{sB}, s{sW}, 1", f"s_lshl1_add_u32 s{sB}, s{sA}, s{sB}", f"s_mul_i32 s{sB}, s{sB}, {RW * 3584}", f"s_sub_u32 s{sB}, s{sB}, {T0 * BLK[1]}",
               f"v_lshrrev_b32 v{u+1}, 2, v{u}", f"v_mul_u32_u24 v{u+1}, 3584, v{u+1}", f"v_and_b32 v{u+2}, 3, v{u}", f"v_mul_u32_u24 v{u+2}, 72, v{u+2}",
               f"v_add3_u32 v{vTa+1}, v{u+1}, v{u+2}, s{sB}"] + oob(vTa + 1, 4 * RW)
        ta += [f"s_lshl2_add_u32 s{sB}, s2, s{sW}", f"s_mul_i32 s{sB}, s{sB}, {LD * 128}", f"s_sub_u32 s{sB}, s{sB}, {T0 * BLK[2]}",
               f"v_lshl_add_u32 v{vTa+2}, v{u}, 7, s{sB}"] + oob(vTa + 2, LD)
        ta += [f"s_mul_i32 s{sA}, s{sHead}, 224", f"s_cmp_lt_u32 s{sW}, 2\ns_cselect_b32 s{sWm}, s{KA+12}, s{KA+14}\ns_cselect_b32 s{sWm+1}, s{KA+13}, s{KA+15}",
               f"s_add_u32 s{sWm}, s{sWm}, s{sA}\ns_addc_u32 s{sWm+1}, s{sWm+1}, 0", f"s_sub_u32 s{sWm+2}, {448 * 3584}, s{sA}",
               f"s_mov_b32 s{sC}, s{KA+16}", f"s_mov_b32 s{sC+1}, s{KA+17}", f"s_mov_b32 s{sC+2}, {1792 * 896}"]
        for k, x in enumerate(ta): fixed[N0(9) + 12 + k].append(Item(x))
        for sg in range(12, 64, 4):
            for k, r in enumerate((sWo, sWm, sC)):
                if str(k) not in opt.get('tsel', '012'): continue
                fixed[G * sg + (2, 30, 66)[k]].append(Item(f"buffer_load_dword v{vTd}, v{vTa + k}, {sr(r,4)}, 0 offen", vm_tag='tch', cost=0))
                fixed[G * sg + (3, 31, 67)[k]].append(Item(f"v_add_u32 v{vTa + k}, {BLK[k]}, v{vTa + k}", cost=0))

    for t in range(32):
        sdone = N0(jK(t)) + G - 1
        pv0 = N0(jV(t))
        if t == 0:
            spread(max_items(0, [0, 1, 2], vTM, True), N0(7) + 47 + HZ, sdone + 1)
            its = max_items(0, [3], vTM, False)
            for qh in range(2):
                its += xlane_reduce("v_max_f32", vTM + qh, vTM + 2)
                its.append(Item(f"v_sub_f32 v{vNEG + 4 * qh}, 0, v{vTM + qh}"))
            its += sm_items(0, sub=True)
            its += [Item(f"v_mov_b32 v{vL + qh}, v{vPS + qh}") for qh in range(2)]
            spread(its, sdone + HZ, pv0 - 2)
            spread([f"v_mov_b32 v{vNEG + 4 * qh + q}, v{vNEG + 4 * qh}" for qh in range(2) for q in range(1, 4)], pv0, pv0 + 10)
            continue
        its = sm_items(t % 2, sub=(t == 1))
        its.append(Item(f"v_max_f32 v{vTM}, v{vPS}, v{vPS + 1}"))
        its.append(Item(f"v_cmp_nge_f32 vcc, s{sThr}, v{vTM}"))
        spread(its, sdone + 2, pv0 - 3)
        post[pv0 - 1].append(Item(f"s_cbranch_vccnz @RARE{t % 2}@\n@BACK@:"))
        valu[pv0] += [Item(f"v_add_f32 v{vL + qh}, v{vL + qh}, v{vPS + qh}") for qh in range(2)]

    pv = N0(70)
    its = []
    for qh in range(2):
        its += xlane_reduce("v_add_f32", vL + qh, vTM) + [Item(f"v_rcp_f32 v{vRL + qh}, v{vL + qh}", cost=2)]
    spread(its, pv + 1, pv + 10)
    for ks in range(8):
        for qh in range(2):
            tb = vOT + 8 * qh
            its = [f"v_accvgpr_read_b32 v{tb + 4 * u + e}, a{aO + 8 * (2 * ks + u) + 4 * qh + e}" for u in range(2) for e in range(4)]
            its += [f"v_cvt_pk_bf16_f32 v{vOB + 8 * ks + 4 * qh + q}, v{tb + 2 * q}, v{tb + 2 * q + 1}" for q in range(4)]
            lo = pv + 12 + (2 * ks + qh) * 6; hi = lo + 5
            assert lo >= last_write[(70, 2 * ks + 1, 1)] + HZ and hi <= first_read[(71, ks, 0)] - 2, (ks, lo, hi)
            spread(its, lo, hi)
    for c in range(7):
        A = vOA[c % 2]; ST = vST[c % 2]
        k = 0
        for a in range(2):
            for qh in range(2):
                its = []
                if a == 0 and qh == 0: its.append(Item(f"s_add_u32 s{sXo}, s{sPart}, {c * 2048}"))
                src = [A + 8 * (2 * a + u) + 4 * qh + e for u in range(2) for e in range(4)]
                st = ST + 8 * a + 4 * qh
                its += [Item(f"v_mul_f32 v{x}, v{vRL + qh}, v{x}") for x in src]
                its += [Item(f"v_cvt_pk_bf16_f32 v{st + q}, v{src[2 * q]}, v{src[2 * q + 1]}") for q in range(4)]
                its.append(Item(f"buffer_store_dwordx4 {vr(st, 4)}, v{vL16 + qh}, {sr(sWS,4)}, s{sXo} offen" + (" offset:1024" if a else "") + opt.get('st_mod', SC), vm_tag=('st', c)))
                lw = last_write[(71 + c, 2 * a + 1, qh)]
                if c == 0: lo = N0(72) + HZ + 8 * k; hi = lo + 7
                else: lo = last_write[(71 + c, 2 * a + 1, 0)] + HZ + 14 * qh + (10 if c == 1 and a == 0 else 0); hi = lo + 13 - (5 if c == 1 and a == 0 else 0)
                assert lo >= lw + HZ
                if hi >= NG:
                    valu[NG].append(Item("s_nop 7")); valu[NG] += its
                else:
                    spread(its, lo, hi)
                k += 1

    E = Emitter()
    P = E.raw
    def PL(l):
        for x in l: E.raw(x)
    def poll(name, load, cmp_, dst):
        P(f"""s_mov_b32 s{sE}, {POLLMAX}
{name}_L:
{load}
s_waitcnt vmcnt(0)
{cmp_}
s_sub_u32 s{sE}, s{sE}, 1
s_cbranch_scc1 {name}_D
s_cmp_eq_u64 vcc, -1
s_cbranch_scc1 {name}_D
s_sleep 1
s_branch {name}_L
{name}_D:""")
    P("s_cmp_ge_u32 s2, 256\ns_cbranch_scc1 K_END")
    PL(stamp_lines())
    W = vL; L = vL + 1; t0 = vFT; t1 = t0 + 1; t2 = t0 + 2; t3 = t0 + 3; t4 = t0 + 4
    pW = 64; pC = 92; pA = 40; pH = 48; pT = 56
    NA = opt.get('na', 4)
    P(f"""s_load_dwordx8 s[{KA+16}:{KA+23}], s[0:1], 64
s_load_dwordx16 s[{KA}:{KA+15}], s[0:1], 0
s_load_dwordx4 s[{KA+24}:{KA+27}], s[0:1], 96
v_lshrrev_b32 v{W}, 6, v0
v_and_b32 v{L}, 63, v0
v_readfirstlane_b32 s{sW}, v{W}
s_bfe_u32 s{sHead}, s2, {(MAP - 1) | ((4 - MAP) << 16)}
s_bfe_u32 s{sA}, s2, {3 | (MAP << 16)}
s_lshl_b32 s{sHead}, s{sHead}, {MAP}
s_lshr_b32 s{sQb}, s2, {3 + MAP}
s_add_u32 s{sHead}, s{sHead}, s{sA}
s_and_b32 s{sA}, s2, {(1 << (MAP - 1)) - 1}
s_lshl_b32 s{sA}, s{sA}, {5 - MAP}
s_add_u32 s{sQb}, s{sQb}, s{sA}
s_lshl2_add_u32 s{sB}, s{sHead}, s{sQb}
s_mul_i32 s{sA}, s{sB}, 37
s_lshr_b32 s{sA}, s{sA}, 8
s_mul_i32 s{sA}, s{sA}, 7
s_sub_u32 s{sB}, s{sB}, s{sA}
s_mul_i32 s{sRot[0]}, s{sB}, {128 * opt.get('rot', 1)}
v_lshrrev_b32 v{t0}, 2, v0
v_and_b32 v{t1}, 3, v0
v_mul_u32_u24 v{t2}, 5376, v{t0}
v_lshl_add_u32 v{t2}, v{t1}, 4, v{t2}
v_lshlrev_b32 v{t3}, 1, v{t0}
v_lshrrev_b32 v{t0}, 2, v{L}
v_mul_u32_u24 v{vX}, 896, v{t0}
v_lshrrev_b32 v{t0}, 4, v{L}
v_sub_u32 v{t0}, 0, v{t0}
v_xor_b32 v{t0}, v{t0}, v{L}
v_and_b32 v{t0}, 3, v{t0}
v_lshl_add_u32 v{vX}, v{t0}, 4, v{vX}
v_add_u32 v{vX+4}, {16 * 896}, v{vX}
v_lshrrev_b32 v{t0}, 5, v{L}
v_and_b32 v{t1}, 31, v{L}
s_lshl_b32 s{sW8}, s{sW}, 13
s_lshl2_add_u32 s{sA}, s{sQb}, s{sW}
s_mul_i32 s{sXo}, s{sA}, {32 * 896}""")
    for c in range(1, 7): P(f"s_add_u32 s{sRot[c]}, s{sRot[c-1]}, 128\ns_cmp_eq_u32 s{sRot[c]}, 896\ns_cselect_b32 s{sRot[c]}, 0, s{sRot[c]}")
    P(f"""s_lshl_b32 s{sD}, s2, 6
s_cmp_ge_u32 s2, 84
s_waitcnt lgkmcnt(0)
{srd(sWm, KA + 20, None, 448 * 5376)}
{srd(sC, KA + 18, None, 896)}
{srd(sX, KA + 0, None, 2048 * 896)}
s_cbranch_scc1 PRO_A""")
    for i in range(7): P(f"buffer_load_ushort v{pC + i}, v{t3}, {sr(sC,4)}, 0 offen" + (f" offset:{128 * i}" if i else ""))
    for i in range(7):
        P(f"buffer_load_dwordx4 {vr(pW + 4 * i, 4)}, v{t2}, {sr(sWm,4)}, s{sD} offen")
        if i < 6: P(f"s_add_u32 s{sD}, s{sD}, {64 * 5376}")
    P("PRO_A:")
    XB = [65536, 32768, 98304, 131072 + 4096]
    xl = lambda s, qh: XB[(2 * s + qh) // 8] + ((2 * s + qh) % 8) * 1024
    def x_dma(s):
        for qh in range(2):
            P(f"s_add_u32 m0, s{sW8}, {xl(s, qh) - 64 * (s & 1)}")
            P(f"s_add_u32 s{sTmp}, s{sXo}, s{sRot[s // 2]}" if (s & 1) == 0 and qh == 0 else "s_nop 0")
            E.item(Item(f"buffer_load_dwordx4 v{vX + 4 * qh}, {sr(sX,4)}, s{sTmp} offen" + (" offset:64" if s & 1 else "") + " lds", vm_tag=('x', s)))
    assert NA % 2 == 0
    for s in range(NA): x_dma(s)
    P(f"""{srd(sWS, KA + 26, opt.get('wsoff'), WS_SIZE - opt.get('wsoff', 0))}
{srd(sDbg, KA + 24, None, 256)}""")
    if opt.get('pst'): PL(stamp_lines())
    P("s_cmp_ge_u32 s2, 84\ns_cbranch_scc1 PRO_B")
    P(f"s_mov_b32 s{sD}, {f2u(-math.log2(math.e))}")
    PL([f"v_mov_b32 v{pA + e}, 0" for e in range(8)])
    P(f"""v_lshrrev_b32 v{t2}, 4, v0
v_and_b32 v{t3}, 3, v0
v_lshlrev_b32 v{t2}, 7, v{t2}
v_lshl_add_u32 v{t2}, v{t3}, 5, v{t2}
v_add_u32 v{t2}, {LDS_SCR}, v{t2}
v_lshlrev_b32 v{t3}, 10, v{t0}
v_lshl_add_u32 v{t3}, v{t1}, 2, v{t3}
v_add_u32 v{t3}, {LDS_SCR}, v{t3}
s_waitcnt vmcnt({7 + 2 * NA})""")
    PL([f"v_lshlrev_b32 v{pC + i}, 16, v{pC + i}" for i in range(7)])
    PL([f"v_mul_f32 v{pT + i}, s{sD}, v{pC + i}" for i in range(7)])
    PL([f"v_exp_f32 v{pT + i}, v{pT + i}" for i in range(7)])
    PL([f"v_add_f32 v{pT + i}, 1.0, v{pT + i}" for i in range(7)])
    PL([f"v_rcp_f32 v{pT + i}, v{pT + i}" for i in range(7)])
    PL([f"v_mul_f32 v{pC + i}, v{pC + i}, v{pT + i}" for i in range(7)])
    PL([f"v_cvt_pk_bf16_f32 v{pC + i}, v{pC + i}, 0" for i in range(7)])
    PL([f"v_lshlrev_b32 v{pH + i}, 16, v{pC + i}" for i in range(7)])
    for i in range(7):
        P(f"s_waitcnt vmcnt({6 + 2 * NA - i})")
        PL([f"v_dot2c_f32_bf16 v{pA + e}, v{pW + 4 * i + e // 2}, v{(pH if e % 2 else pC) + i}" for e in range(8)])
    P("s_nop 2")
    for sh in (4, 8): PL([f"v_add_f32_dpp v{pA + e}, v{pA + e}, v{pA + e} row_ror:{sh} row_mask:0xf bank_mask:0xf" for e in range(8)])
    P(f"""ds_write_b128 v{t2}, {vr(pA, 4)}
ds_write_b128 v{t2}, {vr(pA + 4, 4)} offset:16
s_mul_i32 s{sD}, s2, 4682
s_lshr_b32 s{sD}, s{sD}, 16
s_cmp_lg_u32 s{sW}, 0
s_waitcnt lgkmcnt(0)
s_barrier
s_cbranch_scc1 PRO_B""")
    PL([f"ds_read_b32 v{pA + k}, v{t3} offset:{128 * k}" for k in range(8)])
    P(f"""s_cmp_eq_u32 s{sD}, 1
s_cselect_b32 s{sA}, 1.0, 0
s_cmp_eq_u32 s{sD}, 4
s_cselect_b32 s{sA}, 1.0, s{sA}
s_cmp_lt_u32 s{sD}, 2
s_cselect_b32 s{sB}, {f2u(math.log2(math.e) / 16)}, 1.0
s_cselect_b32 s{sD}, 0, 512
s_lshl_b32 s{sE}, s2, 7
s_add_u32 s{sD}, s{sD}, s{sE}
s_lshl_b32 s{sE}, s2, 2
s_cmp_lt_u32 s2, 28
s_cselect_b32 s{sE}, s{sE}, 192
v_lshlrev_b32 v{t2}, 30, v{t0}
v_lshl_add_u32 v{t2}, v{t1}, 2, v{t2}
v_cmp_eq_u32 vcc, 0, v{L}
v_mov_b32 v{t3}, {OOB}
v_mov_b32 v{pT}, 1
v_cndmask_b32 v{t3}, v{t3}, 0, vcc
s_waitcnt lgkmcnt(0)
v_add_f32 v{pA}, v{pA}, v{pA+1}
v_add_f32 v{pA+2}, v{pA+2}, v{pA+3}
v_add_f32 v{pA+4}, v{pA+4}, v{pA+5}
v_add_f32 v{pA+6}, v{pA+6}, v{pA+7}
v_add_f32 v{pA}, v{pA}, v{pA+2}
v_add_f32 v{pA+4}, v{pA+4}, v{pA+6}
v_add_f32 v{pA}, v{pA}, v{pA+4}
v_mov_b32 v{pA+1}, v{pA}
s_nop 1
v_permlane32_swap_b32 v{pA}, v{pA+1}
v_add_f32 v{pA}, v{pA}, v{pA+1}
v_cvt_pk_bf16_f32 v{pA}, 0, v{pA}
v_add_f32 v{pA}, s{sA}, v{pA}
v_cvt_pk_bf16_f32 v{pA}, 0, v{pA}
v_mul_f32 v{pA}, s{sB}, v{pA}
buffer_store_dword v{pA}, v{t2}, {sr(sWS,4)}, s{sD} offen{SC}
s_waitcnt vmcnt(0)
buffer_atomic_add v{pT}, v{t3}, {sr(sDbg,4)}, s{sE} offen{SC}
PRO_B:""")
    if opt.get('pst'): PL(stamp_lines())
    for s in range(NA, 14): x_dma(s)
    P(f"""s_lshl_b32 s{sD}, s{sHead}, 9
{srd(sWq, KA + 6, f's{sD}', f's_sub_u32 s{sWq+2}, {448 * 8192}, s{sD}')}
v_lshl_add_u32 v{t2}, v{W}, 4, v{t0}
v_lshlrev_b32 v{t2}, 13, v{t2}
v_lshlrev_b32 v{t4}, 1, v{t0}
v_xor_b32 v{t4}, v{t4}, v{t1}
v_lshl_add_u32 v{vDW}, v{t4}, 4, v{t2}
v_xor_b32 v{vDW+1}, 64, v{vDW}
v_xor_b32 v{vDW+2}, 128, v{vDW}
v_xor_b32 v{vDW+3}, 192, v{vDW}
s_lshl_b32 s{sE}, s{sRot[0]}, 1""")
    for c in range(7): P(f"s_lshl_b32 s{sRot[c]}, s{sRot[c]}, 12")
    def w_list(j):
        r = []
        for pre, it, aft in dma_items(j): r.append((pre, it))
        return r
    def w_one(x):
        for y in x[0]: P(y)
        E.item(x[1])
    for x in w_list(0): w_one(x)
    if opt.get('pst'): PL(stamp_lines())
    P(f"""s_mov_b32 s{sKo}, 0
s_mov_b32 s{sVo}, 0
s_mov_b32 s{sThr}, {hex((127 + THR_LOG2) << 23)}
s_lshl_b32 s{sA}, s{sQb}, 2
s_add_u32 s{sA}, s{sA}, s{sW}
s_mul_i32 s{sA}, s{sA}, {28 * 1024}
s_mul_i32 s{sB}, s{sHead}, {FRAGB}
s_add_u32 s{sPart}, s{sA}, s{sB}
s_add_u32 s{sPart}, s{sPart}, {WS_PART}
s_lshl_b32 s{sD}, s{sHead}, 20
{srd(sK, KA + 2, f's{sD}', 0x100000)}
{srd(sV, KA + 4, f's{sD}', 0x100000)}
s_mul_i32 s{sD}, s{sHead}, {256 * 896}
{srd(sWo, KA + 8, f's{sD}', 256 * 896)}
s_and_b32 s{sA}, s{sW}, 1
s_mul_i32 s{sD}, s{sA}, {32 * 3584}
s_mul_i32 s{sB}, s{sHead}, 224
s_add_u32 s{sD}, s{sD}, s{sB}
s_mul_i32 s{sGUl}, s{sA}, 7168
s_cmp_lt_u32 s{sW}, 2
s_cselect_b32 s{sGU}, s{KA+12}, s{KA+14}
s_cselect_b32 s{sGU+1}, s{KA+13}, s{KA+15}
s_cselect_b32 s{sA}, 0, 14464
s_add_u32 s{sGUl}, s{sGUl}, s{sA}
{srd(sGU, sGU, f's{sD}', f's_sub_u32 s{sGU+2}, {448 * 3584}, s{sD}')}
s_lshl_b32 s{sF}, s{sQb}, 7
s_lshl_b32 s{sA}, s{sHead}, 2
s_add_u32 s{sF}, s{sF}, s{sA}
s_add_u32 s{sF}, s{sF}, {WS_FLAG}""")
    P(f"""v_and_b32 v{t2}, 15, v{L}
v_lshrrev_b32 v{t3}, 4, v{L}
v_lshlrev_b32 v{vMod}, 5, v{t3}
s_add_u32 s{sE}, s{sE}, {LDS_MOD}
v_add_u32 v{vMod}, s{sE}, v{vMod}
v_xor_b32 v{t3}, v{t3}, v{t2}
v_lshlrev_b32 v{t2}, 9, v{t2}
v_lshl_add_u32 v{t3}, v{t3}, 4, v{t2}
v_add_u32 v{t3}, {SLOT[3]}, v{t3}""")
    for q in range(4): P(f"v_xor_b32 v{vK + q}, {64 * q}, v{t3}")
    P(f"""v_lshrrev_b32 v{t2}, 2, v{L}
v_lshlrev_b32 v{t3}, 9, v{t2}
v_and_b32 v{t2}, 7, v{t2}
v_lshl_add_u32 v{t3}, v{t2}, 5, v{t3}
v_and_b32 v{t2}, 3, v{L}
v_lshl_add_u32 v{t3}, v{t2}, 3, v{t3}
v_lshrrev_b32 v{t2}, 4, v{L}
v_lshl_add_u32 v{t2}, v{t2}, 11, v{t3}""")
    for q in range(8):
        P(f"v_xor_b32 v{vV + q}, {0x10000 + 32 * q}, v{t3}")
        P(f"v_xor_b32 v{vWlo + q}, {32 * q}, v{t2}")
        P(f"v_xor_b32 v{vWhi + q}, {0x10000 + 32 * q}, v{t2}")
    P(f"v_lshlrev_b32 v{t2}, 13, v{W}")
    P(f"v_lshl_add_u32 v{t2}, v{t0}, 9, v{t2}")
    P(f"v_xor_b32 v{t3}, v{t1}, v{t0}")
    P(f"v_lshl_add_u32 v{t3}, v{t3}, 4, v{t2}")
    for q in range(8): P(f"v_xor_b32 v{vDK + q}, {(2 * q) * 16 + (q // 4) * 4096}, v{t3}")
    P(f"v_lshl_add_u32 v{t3}, v{t4}, 4, v{t2}")
    for q in range(8): P(f"v_xor_b32 v{vDV + q}, {(q % 4) * 64 + (q // 4) * 4096}, v{t3}")
    if opt.get('pst'): PL(stamp_lines())
    S1 = 40; S2 = 42; TT = 44; XR = 114
    P(f"""v_bfe_u32 v{t2}, v{L}, 2, 2
v_sub_u32 v{t2}, 0, v{t2}
v_lshrrev_b32 v{t3}, 4, v{L}
v_xor_b32 v{t2}, v{t2}, v{t3}
v_and_b32 v{t2}, 3, v{t2}
v_and_b32 v{t3}, 15, v{L}
v_lshlrev_b32 v{t3}, 6, v{t3}
v_lshl_add_u32 v{t2}, v{t2}, 4, v{t3}
v_add_u32 v{XR}, s{sW8}, v{t2}
v_add_u32 v{XR+1}, 0x10000, v{XR}
v_add_u32 v{XR+2}, 0x20000, v{XR}
s_mov_b32 s{sA}, 0x3f803f80
s_mov_b32 s{sB}, {f2u(1 / 448)}
s_mov_b32 s{sD}, 0xffff0000""")
    PL([f"v_mov_b32 v{S1 + k}, 0" for k in range(4)])
    def x_read(s):
        for qh in range(2):
            o = xl(s, qh)
            E.item(Item(f"ds_read_b128 {vr(vXN + 4 * (14 * qh + s), 4)}, v{XR + o // 65536} offset:{o % 65536}", lds_tag=('xr', s), need_vm=(('x', s),)))
    XLA = 2
    for s in range(XLA): x_read(s)
    if opt.get('pst'): PL(stamp_lines())
    for s in range(14):
        if s + XLA < 14: x_read(s + XLA)
        E.wait_lds((('xr', s),))
        for d in range(4):
            for qh in range(2):
                x = vXN + 4 * (14 * qh + s) + d
                P(f"v_dot2c_f32_bf16 v{S1 + qh}, s{sA}, v{x}\nv_dot2c_f32_bf16 v{S2 + qh}, v{x}, v{x}")
    if opt.get('pst'): PL(stamp_lines())
    wl = [x for j in range(1, NPRE) for x in w_list(j)]
    if wl: w_one(wl.pop(0))
    P("s_nop 2")
    PL(xlane_multi("v_add_f32", [S1, S1 + 1, S2, S2 + 1], [TT, TT + 1, TT + 2, TT + 3]))
    for qh in range(2): P(f"v_mul_f32 v{S1 + qh}, s{sB}, v{S1 + qh}\nv_mul_f32 v{S2 + qh}, s{sB}, v{S2 + qh}")
    for qh in range(2): P(f"v_fma_f32 v{S2 + qh}, -v{S1 + qh}, v{S1 + qh}, v{S2 + qh}")
    for qh in range(2): P(f"v_max_f32 v{S2 + qh}, 0, v{S2 + qh}")
    for qh in range(2): P(f"v_add_f32 v{S2 + qh}, {f2u(1e-5)}, v{S2 + qh}")
    for qh in range(2): P(f"v_rsq_f32 v{S2 + qh}, v{S2 + qh}")
    P("s_nop 0")
    for qh in range(2): P(f"v_mul_f32 v{S1 + qh}, -v{S1 + qh}, v{S2 + qh}")
    for s in range(14):
        for qh in range(2):
            if wl: w_one(wl.pop(0))
            x = vXN + 4 * (14 * qh + s)
            for d in range(4): P(f"v_lshlrev_b32 v{TT+2*d}, 16, v{x+d}\nv_and_b32 v{TT+2*d+1}, s{sD}, v{x+d}")
            for e in range(8): P(f"v_fma_f32 v{TT+e}, v{TT+e}, v{S2+qh}, v{S1+qh}")
            for d in range(4): P(f"v_cvt_pk_f16_f32 v{x+d}, v{TT+2*d}, v{TT+2*d+1}")
    assert not wl
    PL(stamp_lines())
    P(f"""s_cmp_lg_u32 s{sW}, 0
s_cbranch_scc1 PRO_C
v_min_u32 v{t2}, 27, v{L}
v_lshlrev_b32 v{t2}, 2, v{t2}
v_lshlrev_b32 v{t3}, 4, v{L}""")
    poll("POLL0", f"buffer_load_dword v{t4}, v{t2}, {sr(sDbg,4)}, 0 offen{SC}", f"v_cmp_ne_u32 vcc, 0, v{t4}", t4)
    for q in range(4): P(f"buffer_load_dwordx4 {vr(vMV + 4 * q, 4)}, v{t3}, {sr(sWS,4)}, 0 offen" + (f" offset:{1024 * q}" if q else "") + SC)
    P(f"""v_cmp_gt_u32 vcc, 48, v{L}
v_add_u32 v{t3}, {LDS_MOD}, v{t3}
v_add_u32 v{t2}, 1792, v{t3}
v_cndmask_b32 v{t2}, v{t2}, v{t3}, vcc""")
    for cp in range(2):
        for q in range(4):
            if cp == 0: P(f"s_waitcnt vmcnt({3 - q})")
            P(f"ds_write_b128 v{t2 if q == 1 else t3}, {vr(vMV + 4 * q, 4)} offset:{1024 * q + 1792 * cp + (1792 if q >= 2 else 0)}")
    P("s_waitcnt lgkmcnt(0)\nPRO_C:")
    for j in range(NPRE, 4):
        for x in w_list(j): w_one(x)
    head = E.out; E.out = []

    def bar(E, it):
        j = it[1]
        if j > 0: E.wait_lds((('f', j - 1, 31),))
        E.wait_vm((('tile', j),))
    segs = S_.emit(E, G, MINAGE, bar)

    import tail
    tl = tail.gen_tail(E, opt, poll, stamp_lines, gu_dma, put_dma, GU_SLOT)

    clean = lambda l: [x.replace('@RARE0@', 'R').replace('@RARE1@', 'R').replace('@BACK@', 'B') for x in l]
    best = (0, 0)
    for a in range(len(segs)):
        b = a
        while b + 4 < len(segs) and segs[b] == segs[b + 4]: b += 1
        ntrip = (b + 4 - a) // 4
        if ntrip > best[1]: best = (a, ntrip)
    a, ntrip = best
    out = list(head)
    stubs = []
    cnt = [0]
    def put(seg, k=None):
        if stamps is not None and k in stamps: out.extend(stamp_lines())
        for x in seg:
            if '@RARE' in x:
                cnt[0] += 1
                par = x[x.index('@RARE') + 5]
                stubs.extend([f"K_STUB{cnt[0]}:", f"s_call_b64 {sr(sRet,2)}, K_RARE{par}", f"s_branch K_BACK{cnt[0]}"])
                x = x.replace(f'@RARE{par}@', f"K_STUB{cnt[0]}")
            x = x.replace('@BACK@', f"K_BACK{cnt[0]}")
            out.append(x)
    for k, s in enumerate(segs[:a]): put(s, k)
    out.extend(stamp_lines())
    out.append(f"s_mov_b32 s{sCnt}, {ntrip - 1}")
    if opt.get('align'): out.append(f".p2align {opt['align']}")
    out.append("K_LOOP:")
    abl = [_re.compile(x) for x in opt.get('ablate', [])]
    for s in segs[a:a + 4]: put([x for x in s if not any(r.search(x) for r in abl)])
    out += [f"s_sub_u32 s{sCnt}, s{sCnt}, 1", "s_cbranch_scc0 K_LOOP"]
    rest = segs[a + 4 * ntrip:]
    if stamps is not None: out.append(f"v_mov_b32 v{vSTMP}, v255"); streg[0] = vSTMP
    out.extend(stamp_lines())
    abl2 = [_re.compile(x) for x in opt.get('ablate2', [])]
    for k, s in enumerate(rest): put([x for x in s if not any(r.search(x) for r in abl2)], k + len(segs) - len(rest))
    tl = [y for x in tl for y in (stamp_lines() if x == '@STAMP@' else [x])]
    out += tl
    errs = check_hazards(clean(head + [x for s in segs for x in s] + tl), 'main')
    out.append("K_FIN:")
    if stamps is not None:
        out += ["s_waitcnt vmcnt(0)"] + stamp_lines()
        out += [f"s_lshl_b32 s{sA}, s2, 2", f"s_add_u32 s{sA}, s{sA}, s{sW}", f"s_lshl_b32 s{sA}, s{sA}, 8", f"s_add_u32 s{sA}, s{sA}, {WS_END}",
                "v_and_b32 v1, 63, v0", "v_lshlrev_b32 v1, 2, v1", f"buffer_store_dword v{vSTMP}, v1, {sr(sWS,4)}, s{sA} offen"]
    out += ["K_END:", "s_endpgm"]
    out += stubs
    E.out = ["CHK_SLOW:"]
    poll("POLLC", CHKLD, f"v_cmp_eq_u32 vcc, v{o0+1}, v{o0+2}", o0 + 2)
    out += E.out + ["s_branch CHK_BACK"]; E.out = []
    for b in range(2):
        r = [f"K_RARE{b}:", "s_nop 15"]
        r += [x.text for x in max_items(b, [0, 1, 2, 3], vTM, True)]
        for qh in range(2):
            r += [x.text for x in xlane_reduce("v_max_f32", vTM + qh, vTM + 2)]
            r += [f"v_max_f32 v{vTM + qh}, 0, v{vTM + qh}"]
        for qh in range(2):
            r += [f"v_sub_f32 v{vTM + 2 + qh}, 0, v{vTM + qh}", f"v_exp_f32 v{vTM + 2 + qh}, v{vTM + 2 + qh}"]
        for qh in range(2):
            regs = [Sr(bb, kb, qh) + e for bb in range(2) for kb in range(4) for e in range(4)] + [vNEG + 4 * qh + e for e in range(4)]
            r += [f"v_sub_f32 v{x}, v{x}, v{vTM + qh}" for x in regs]
            r += [f"v_mul_f32 v{vL + qh}, v{vL + qh}, v{vTM + 2 + qh}"]
        for q in range(0, 128, 8):
            r += [f"v_accvgpr_read_b32 v{vT + e}, a{aO + q + e}" for e in range(8)]
            r += [f"v_mul_f32 v{vT + e}, v{vT + e}, v{vTM + 2 + e // 4}" for e in range(8)]
            r += [f"v_accvgpr_write_b32 a{aO + q + e}, v{vT + e}" for e in range(8)]
        r += [x.text for x in sm_items(b)]
        r += ["s_nop 4", f"s_setpc_b64 {sr(sRet,2)}"]
        errs += check_hazards(r, f'rare{b}')
        out += r
    info = dict(loop_start=a, ntrip=ntrip, nseg=len(segs), nstamps=nst[0])
    return out, errs, info
```

```python
from fused import *

vDn = 8; vGUr = 9; vDnr = 12; vP1 = 18; vP3 = 19; vXo = 20; vMo = 22; vX1s = 24; vMask = 26; vFld = 28; vScrW = 29; vScrR = 30; vLn = 31
vTt = 32
vGbo = 1; vOo = 2; vRW = 3; vRR = 4; vFv = 5
sR2 = 92; sC2 = 93
vXr = 40; vGA = 64; vB1 = 80; vB0 = 96; vAC = 112; vPL = 128
aH2 = 0; aR = 128; NR1 = 32; vG = 64; vGT = 176; vHH = 192
aHB = 0; vGB = 64; vR2 = 80; NR2 = 28; vD = 192; vX1 = 40

def gen_tail(E, opt, poll, stamp_lines, gu_dma, put_dma, GU_SLOT):
    SC = ' sc1'
    P = E.raw
    def PL(l):
        for x in l: E.raw(x)
    def dma_now(its):
        for pre, it, aft in its:
            for x in pre: P(x)
            if E.out[-1].startswith('s_add_u32 m0'): P('s_nop 0')
            E.item(it)
    def flag(stage):
        P(f"v_mov_b32 v{vFv}, {stage}\nbuffer_store_dword v{vFv}, v{vFst}, {sr(sWS,4)}, s{sF} offen{SC}")
    def wait_flags(name, stage, srow):
        P(f"s_cmp_lg_u32 s{sW}, 0\ns_cbranch_scc1 {name}_X")
        poll(name, f"buffer_load_dword v{vTt}, v{vFld}, {sr(sWS,4)}, s{srow} offen{SC}", f"v_cmp_le_u32 vcc, {stage}, v{vTt}", vTt)
        P(f"{name}_X:\ns_barrier")
    a, b, c, d, e_ = vTt, vTt + 1, vTt + 2, vTt + 3, vTt + 4
    P('@STAMP@')
    sRow = sKo; sRow3 = sVo; sPo = sPart; sH2s = sXo; sX1s = sCnt; sXs = sThr
    P(f"""v_and_b32 v{a}, 63, v0
v_lshlrev_b32 v{vLn}, 4, v{a}
v_lshrrev_b32 v{b}, 3, v{a}
v_and_b32 v{c}, 7, v{a}
v_cmp_gt_u32 vcc, 56, v{a}
v_mov_b32 v{e_}, {OOB}
s_mul_i32 s{sA}, s{sW}, 14
v_cndmask_b32 v{e_}, v{e_}, 0, vcc
v_cndmask_b32 v{vMask}, 0, 1.0, vcc
v_lshl_add_u32 v{d}, v{c}, 4, v{e_}
v_lshl_add_u32 v{vP1}, v{b}, 8, v{d}
v_lshl_add_u32 v{vP3}, v{b}, 9, v{d}""")
    for p in range(2):
        P(f"""v_add_u32 v{vMo+p}, s{sA}, v{b}
s_add_u32 s{sA}, s{sA}, 7
v_and_b32 v{vXo+p}, 3, v{vMo+p}
v_lshrrev_b32 v{vMo+p}, 2, v{vMo+p}
v_lshl_add_u32 v{vMo+p}, v{vMo+p}, 3, v{vXo+p}
v_lshl_add_u32 v{vX1s+p}, v{vMo+p}, 9, v{d}
v_mul_u32_u24 v{vXo+p}, 896, v{c}
v_lshl_add_u32 v{vXo+p}, v{vMo+p}, 3, v{vXo+p}
v_add_u32 v{vXo+p}, v{vXo+p}, v{e_}
v_lshl_add_u32 v{vMo+p}, v{vMo+p}, 4, v{e_}""")
    P(f"""s_lshl_b32 s{sA}, s{sQb}, 4
s_add_u32 s{sA}, s{sA}, s{sHead}
s_mul_i32 s{sXs}, s{sA}, {8 * 896}
s_mov_b32 s{sB}, {WS_GA}
s_mov_b32 s{sD}, {WS_B1}""")
    for p in range(2):
        for hf in range(2):
            E.item(Item(f"buffer_load_dwordx2 {vr(vXr + 4 * p + 2 * hf, 2)}, v{vXo+p}, {sr(sX,4)}, s{sXs} offen" + (" offset:32" if hf else ""), vm_tag='t2e'))
            E.item(Item(f"buffer_load_dwordx4 {vr(vGA + 8 * p + 4 * hf, 4)}, v{vMo+p}, {sr(sWS,4)}, s{sB} offen" + (" offset:64" if hf else "") + SC, vm_tag='t2e'))
            E.item(Item(f"buffer_load_dwordx4 {vr(vB0 + 8 * p + 4 * hf, 4)}, v{vMo+p}, {sr(sWS,4)}, s{sB} offen offset:{1792 + 64 * hf}" + SC, vm_tag='t2e'))
            E.item(Item(f"buffer_load_dwordx4 {vr(vB1 + 8 * p + 4 * hf, 4)}, v{vMo+p}, {sr(sWS,4)}, s{sD} offen" + (" offset:64" if hf else "") + SC, vm_tag='t2e'))
    E.wait_lds((('f', 77, 31),))
    E.wait_vm((('st', 6),))
    P("s_barrier")
    flag(1)
    P('@STAMP@')
    dma_now(gu_dma(4))
    P(f"""s_lshr_b32 s{sB}, s{sA}, 1
s_mul_i32 s{sPo}, s{sB}, 14336
s_and_b32 s{sB}, s{sA}, 1
s_lshl_b32 s{sB}, s{sB}, 7
s_add_u32 s{sPo}, s{sPo}, s{sB}
s_mul_i32 s{sB}, s{sW}, {14 * 256}
s_add_u32 s{sPo}, s{sPo}, s{sB}
s_add_u32 s{sPo}, s{sPo}, {WS_PART}
s_lshr_b32 s{sB}, s{sA}, 2
s_and_b32 s{sA}, s{sA}, 3
s_lshl_b32 s{sA}, s{sA}, 7
s_mul_i32 s{sH2s}, s{sB}, 28672
s_lshl_b32 s{sX1s}, s{sH2s}, 1
s_add_u32 s{sX1s}, s{sX1s}, s{sA}
s_add_u32 s{sX1s}, s{sX1s}, {WS_X1}
s_add_u32 s{sH2s}, s{sH2s}, s{sA}
s_mul_i32 s{sB}, s{sW}, {14 * 512}
s_add_u32 s{sH2s}, s{sH2s}, s{sB}
s_add_u32 s{sH2s}, s{sH2s}, {WS_H2}
s_lshl_b32 s{sRow}, s{sQb}, 7
s_add_u32 s{sRow}, s{sRow}, {WS_FLAG}
s_and_b32 s{sR2}, s2, 7
s_bfe_u32 s{sC2}, s2, 0x10003
s_lshl1_add_u32 s{sR2}, s{sR2}, s{sC2}
s_lshr_b32 s{sC2}, s2, 4
s_lshl_b32 s{sRow3}, s{sR2}, 7
s_add_u32 s{sRow3}, s{sRow3}, {WS_FLAG}
v_and_b32 v{vFld}, 15, v{a}
v_lshlrev_b32 v{vFld}, 2, v{vFld}
v_lshlrev_b32 v{vScrR}, 3, v{c}
v_add_u32 v{vScrR}, {LDS_LN}, v{vScrR}
s_lshl_b32 s{sA}, s{sW}, 6
v_add_u32 v{vScrW}, s{sA}, v{vScrR}""")
    P(f"""v_bfe_u32 v{b}, v{a}, 2, 2
v_lshrrev_b32 v{c}, 5, v{a}
v_lshl_add_u32 v{b}, v{c}, 2, v{b}
v_and_b32 v{c}, 3, v{a}
v_lshlrev_b32 v{c}, 3, v{c}
v_bfe_u32 v{d}, v{a}, 4, 1
v_mul_u32_u24 v{vGUr}, 224, v{b}
v_mul_u32_u24 v{e_}, 14464, v{d}
v_add3_u32 v{vGUr}, v{vGUr}, v{e_}, v{c}
v_add_u32 v{vGUr+1}, 0x10000, v{vGUr}
v_add_u32 v{vGUr+2}, 0x20000, v{vGUr}
v_lshl_add_u32 v{c}, v{d}, 5, v{c}
v_lshl_add_u32 v{c}, v{b}, 7, v{c}
v_bfe_u32 v{d}, v{a}, 3, 1
v_lshl_add_u32 v{c}, v{d}, 6, v{c}
v_add_u32 v{vDnr}, s{sW8}, v{c}
v_xor_b32 v{vDnr+1}, 64, v{vDnr}
v_add_u32 v{vDnr+2}, 0x10000, v{vDnr}
v_add_u32 v{vDnr+3}, 0x10000, v{vDnr+1}
v_add_u32 v{vDnr+4}, 0x20000, v{vDnr}
v_add_u32 v{vDnr+5}, 0x20000, v{vDnr+1}
v_lshrrev_b32 v{b}, 3, v{a}
v_mul_u32_u24 v{b}, 896, v{b}
v_bfe_u32 v{c}, v{a}, 4, 1
v_lshlrev_b32 v{c}, 2, v{c}
v_and_b32 v{d}, 7, v{a}
v_xor_b32 v{c}, v{c}, v{d}
v_lshl_add_u32 v{vDn}, v{c}, 4, v{b}
v_lshrrev_b32 v{b}, 5, v{a}
v_lshlrev_b32 v{vGbo}, 4, v{b}
v_and_b32 v{c}, 31, v{a}
v_mul_u32_u24 v{c}, 896, v{c}
v_add_u32 v{vOo}, v{c}, v{vGbo}
s_lshr_b32 s{sA}, s{sC2}, 1
s_lshl_b32 s{sA}, s{sA}, 7
s_mul_i32 s{sB}, s{sW}, {448 * 896}
s_add_u32 s{sA}, s{sA}, s{sB}
{srd(sDn, KA + 16, f's{sA}', f's_sub_u32 s{sDn+2}, {1792 * 896}, s{sA}')}
{srd(sOut, KA + 22, None, 2048 * 896)}
s_mov_b32 s{sA}, 0x3f80
s_mov_b32 s{sB}, 0x3f800000""")
    PL([f"v_mov_b32 v{vAC + k}, 0" for k in range(16)])
    wait_flags("POLL1", 1, sRow)
    P('@STAMP@')
    for h in range(16):
        for p in range(2):
            E.item(Item(f"buffer_load_dwordx4 {vr(vPL + 8 * h + 4 * p, 4)}, v{vP1}, {sr(sWS,4)}, s{sPo} offen" + (" offset:1792" if p else "") + SC, vm_tag=('pl', h)))
        if h < 15: P(f"s_add_u32 s{sPo}, s{sPo}, {FRAGB}")
    for h in range(16):
        E.wait_vm((('pl', h),))
        PL([f"v_dot2c_f32_bf16 v{vAC + k}, s{sB if k % 2 else sA}, v{vPL + 8 * h + k // 2}" for k in range(16)])
    P('@STAMP@')
    P(f"s_mov_b32 s{sD}, 0xffff0000")
    xt = vPL
    for k in range(16):
        P(f"v_and_b32 v{xt + k}, s{sD}, v{vXr + k // 2}" if k % 2 else f"v_lshlrev_b32 v{xt + k}, 16, v{vXr + k // 2}")
    PL([f"v_fma_f32 v{vAC + k}, v{vAC + k}, v{vGA + k}, v{xt + k}" for k in range(16)])
    for p in range(2):
        for hf in range(2):
            E.item(Item(f"buffer_store_dwordx4 {vr(vAC + 8 * p + 4 * hf, 4)}, v{vX1s+p}, {sr(sWS,4)}, s{sX1s} offen" + (" offset:2048" if hf else "") + SC, vm_tag='x1'))
    def tree(src, dst):
        PL([f"v_add_f32 v{dst + k}, v{src + 2 * k}, v{src + 2 * k + 1}" for k in range(8)])
        for w in (4, 2, 1): PL([f"v_add_f32 v{dst + k}, v{dst + k}, v{dst + k + w}" for k in range(w)])
    def wave_red(r, t):
        P(f"s_nop 1\nv_add_f32_dpp v{r}, v{r}, v{r} row_ror:8 row_mask:0xf bank_mask:0xf")
        PL(xlane_multi("v_add_f32", [r], [t]))
    m = xt + 32; q = xt + 33; w0 = xt + 16
    tree(vAC, w0); wave_red(w0, w0 + 1)
    P(f"v_mul_f32 v{m}, {f2u(1 / 112)}, v{w0}")
    PL([f"v_sub_f32 v{xt + k}, v{vAC + k}, v{m}" for k in range(16)])
    PL([f"v_mul_f32 v{xt + k}, v{xt + k}, v{xt + k}" for k in range(16)])
    tree(xt, w0)
    P(f"v_mul_f32 v{q}, v{vMask}, v{w0}")
    wave_red(q, w0 + 1)
    P(f"ds_write_b64 v{vScrW}, {vr(m, 2)}\ns_waitcnt lgkmcnt(0)\ns_barrier")
    for w in range(4): P(f"ds_read_b64 {vr(w0 + 2 * w, 2)}, v{vScrR}" + (f" offset:{64 * w}" if w else ""))
    P(f"""s_waitcnt lgkmcnt(0)
v_add_f32 v{m}, v{w0}, v{w0+2}
v_add_f32 v{q}, v{w0+4}, v{w0+6}
v_add_f32 v{w0+1}, v{w0+1}, v{w0+3}
v_add_f32 v{m}, v{m}, v{q}
v_add_f32 v{w0+5}, v{w0+5}, v{w0+7}
v_mul_f32 v{m}, 0.25, v{m}
v_add_f32 v{w0+1}, v{w0+1}, v{w0+5}
v_sub_f32 v{w0}, v{w0}, v{m}
v_sub_f32 v{w0+2}, v{w0+2}, v{m}
v_sub_f32 v{w0+4}, v{w0+4}, v{m}
v_sub_f32 v{w0+6}, v{w0+6}, v{m}
v_mul_f32 v{q}, v{w0}, v{w0}
v_fma_f32 v{q}, v{w0+2}, v{w0+2}, v{q}
v_fma_f32 v{q}, v{w0+4}, v{w0+4}, v{q}
v_fma_f32 v{q}, v{w0+6}, v{w0+6}, v{q}
v_mul_f32 v{w0+1}, {f2u(1 / 448)}, v{w0+1}
v_fma_f32 v{q}, v{q}, 0.25, v{w0+1}
v_add_f32 v{q}, {f2u(1e-5)}, v{q}
v_rsq_f32 v{q}, v{q}""".replace("0.25", f"s{sA}").replace("s_waitcnt lgkmcnt(0)", f"s_mov_b32 s{sA}, {f2u(0.25)}\ns_waitcnt lgkmcnt(0)"))
    PL([f"v_sub_f32 v{xt + k}, v{vAC + k}, v{m}" for k in range(16)])
    PL([f"v_mul_f32 v{vB1 + k}, v{vB1 + k}, v{q}" for k in range(16)])
    PL([f"v_fma_f32 v{xt + k}, v{xt + k}, v{vB1 + k}, v{vB0 + k}" for k in range(16)])
    PL([f"v_cvt_pk_bf16_f32 v{w0 + k}, v{xt + 2 * k}, v{xt + 2 * k + 1}" for k in range(8)])
    for p in range(2):
        E.item(Item(f"buffer_store_dwordx4 {vr(w0 + 4 * p, 4)}, v{vP3}, {sr(sWS,4)}, s{sH2s} offen" + (" offset:3584" if p else "") + SC, vm_tag='h2s'))
    E.lds_done = len(E.lds)

    NM0 = opt.get('nm0', 4); LA = opt.get('la1', 28); CAP = opt.get('cap1', 6)
    order = [(t, ks) for ks in range(4 * NM0) for t in range(7)] + [(t, ks) for t in range(7) for ks in range(4 * NM0, 28)]
    N1 = len(order)
    S = Sched(N1, opt)
    def rd1(k):
        t, ks = order[k]; c = ks // 4; sl = GU_SLOT[c]; f = aR + 4 * (k % NR1)
        o = sl % 65536 + (32 * ((ks >> 1) & 1) + 8 * (ks & 1)) * 224 + 32 * t
        return [Item(f"ds_read_b64_tr_b16 {ar(f,2)}, v{vGUr + sl // 65536} offset:{o}", lds_tag=('g', k)),
                Item(f"ds_read_b64_tr_b16 {ar(f+2,2)}, v{vGUr + sl // 65536} offset:{o + 16 * 224}", lds_tag=('g', k))]
    lw = {}
    for k, (t, ks) in enumerate(order):
        acc = vr(vG + 16 * t, 16)
        S.mf[k] = f"{MF32} {acc}, {ar(aR + 4 * (k % NR1), 4)}, {ar(aH2 + 4 * ks, 4)}, {0 if ks == 0 else acc}"
        S.need[k] = (('g', k),); S.needvm[k] = (('h2', ks),); lw[t] = k
    first6 = min(k for k, (t, ks) in enumerate(order) if ks // 4 == 6)
    B6 = first6 - opt.get('b6', 8)
    pos = {}; prev = -1
    for k in range(28, N1):
        g = max(k - LA, prev + 1, B6 if k >= first6 else 0)
        assert g <= k - 4 and g >= k - NR1 + 1, (k, g)
        pos[k] = g; prev = g
    free_after = sorted(set(range(2, NM0)))
    DN_SLOT = [GU_SLOT[c] for c in free_after] + [GU_SLOT[c] for c in range(NM0, 7)]
    NE = len(free_after)
    DN_SLOT += DN_SLOT[:2]
    def dn_dma(j):
        its = []
        for q in range(8):
            pre = []
            if q % 4 == 0: pre.append(f"s_add_u32 m0, s{sW8}, {DN_SLOT[j] + (q // 4) * 4096}")
            imm = (q % 4) * 1024
            pre.append(f"s_mov_b32 s{sTmp}, {(64 * j + 8 * q) * 896 - imm}")
            its.append((pre, Item(f"buffer_load_dwordx4 v{vDn}, {sr(sDn,4)}, s{sTmp} offen" + (f" offset:{imm}" if imm else "") + " lds", vm_tag=('dn', j)), []))
        return its
    bars = {}
    for c in range(1, NM0):
        g = pos[28 * c + 27] + 3
        bars[g] = ([('g', 28 * c + 27)], [('gu', 5)] if c == 1 else [])
        put_dma(S, gu_dma(6) if c == 1 else dn_dma(c - 2), g + 3, 2)
    assert B6 not in bars and B6 > max(bars)
    bars[B6] = ([], [('gu', 6)])
    for g in bars: S.fixed[g].insert(0, ('BAR', g))
    for k in range(28, N1): S.fixed[pos[k]] += rd1(k)
    ca_ = -2 * math.log2(math.e) * math.sqrt(2 / math.pi)
    groups = []
    for t in range(7):
        g0 = vG + 16 * t; its = []
        for hf in range(2):
            r = [g0 + 4 * hf + e for e in range(4)]; T = [vGT + 8 * hf + e for e in range(4)]
            its += [f"v_mul_f32 v{T[e]}, v{r[e]}, v{r[e]}" for e in range(4)]
            its += [f"v_fma_f32 v{T[e]}, v{T[e]}, s{sA}, v{vGT + 4}" for e in range(4)]
            its += [f"v_mul_f32 v{T[e]}, v{T[e]}, v{r[e]}" for e in range(4)]
            for e in range(4): its += [Item(f"v_exp_f32 v{T[e]}, v{T[e]}", cost=2), f"v_mul_f32 v{r[e]}, v{r[e]}, v{r[e] + 8}"]
            its += [f"v_add_f32 v{T[e]}, 1.0, v{T[e]}" for e in range(4)]
            its += [Item(f"v_rcp_f32 v{T[e]}, v{T[e]}", cost=2) for e in range(4)]
            its += [f"v_mul_f32 v{r[e]}, v{r[e]}, v{T[e]}" for e in range(4)]
            its += [f"v_cvt_pk_bf16_f32 v{vHH + 4 * t + 2 * hf + e}, v{r[2 * e]}, v{r[2 * e + 1]}" for e in range(2)]
        if t == 4: its.append(f"s_add_u32 s{sB}, s{sB}, 4096")
        its.append(Item(f"buffer_store_dwordx4 {vr(vHH + 4 * t, 4)}, v{vLn}, {sr(sWS,4)}, s{sB} offen" + (f" offset:{1024 * (t % 4)}" if t % 4 else "") + SC, vm_tag='hh'))
        groups.append((lw[t] + 4, its))
    S.stream(groups, CAP)
    E.time = -100
    for k in range(28):
        for it in rd1(k): E.item(it)
    P(f"""s_lshl_b32 s{sD}, s{sQb}, 2
s_add_u32 s{sD}, s{sD}, s{sW}
s_mul_i32 s{sB}, s{sD}, 114688
s_mul_i32 s{sA}, s{sHead}, 7168
s_add_u32 s{sB}, s{sB}, s{sA}
s_add_u32 s{sB}, s{sB}, {WS_HH}
s_mul_i32 s{sD}, s{sD}, 28672
s_add_u32 s{sD}, s{sD}, {WS_H2}
s_mov_b32 s{sA}, {f2u(ca_ * 0.044715)}
v_mov_b32 v{vGT + 4}, {f2u(ca_)}""")
    E.wait_both(('h2s',))
    P("s_barrier")
    flag(2)
    P('@STAMP@')
    dma_now(gu_dma(5))
    wait_flags("POLL2", 2, sRow)
    P('@STAMP@')
    for ks in range(28):
        if ks % 4 == 0 and ks: P(f"s_add_u32 s{sD}, s{sD}, 4096")
        E.item(Item(f"buffer_load_dwordx4 {ar(aH2 + 4 * ks, 4)}, v{vLn}, {sr(sWS,4)}, s{sD} offen" + (f" offset:{1024 * (ks % 4)}" if ks % 4 else "") + SC, vm_tag=('h2', ks)))
    def bar1(E, it):
        l, v = bars[it[1]]
        if l: E.wait_lds(l)
        if v: E.wait_vm(v)
    pre = E.out; E.out = []
    sg = S.emit(E, 10 ** 6, opt.get('minage1', 3), bar1)
    E.out = pre + sg[0]
    P('@STAMP@')

    def rd2(k):
        ks, nt = k // 2, k % 2; sl = DN_SLOT[ks // 4]; f = vR2 + 4 * (k % NR2)
        o = sl % 65536 + (ks % 4) * 2048; bs = vDnr + 2 * (sl // 65536) + nt
        return [Item(f"ds_read_b64_tr_b16 {vr(f,2)}, v{bs} offset:{o}", lds_tag=('d', k), need_vm=(('dn', ks // 4),)),
                Item(f"ds_read_b64_tr_b16 {vr(f+2,2)}, v{bs} offset:{o + 1024}", lds_tag=('d', k))]
    E.wait_vm(('hh',))
    P("s_barrier")
    flag(3)
    P('@STAMP@')
    P(f"s_cmp_ge_u32 s{sC2}, 14\ns_cbranch_scc1 K_FIN")
    E.time = -100
    for k in range(8 * NE):
        for it in rd2(k): E.item(it)
    for j in range(NE, 5): dma_now(dn_dma(j))
    for k in range(8 * NE, 16):
        for it in rd2(k): E.item(it)
    sH0 = sPart; sH1 = sXo; sXl = sCnt; sOs = sThr
    P(f"""s_and_b32 s{sA}, s{sC2}, 1
s_lshl_b32 s{sA}, s{sA}, 1
s_lshl_b32 s{sB}, s{sR2}, 2
s_add_u32 s{sA}, s{sA}, s{sB}
s_mul_i32 s{sH0}, s{sA}, 114688
s_mul_i32 s{sB}, s{sW}, 28672
s_add_u32 s{sH0}, s{sH0}, s{sB}
s_add_u32 s{sH0}, s{sH0}, {WS_HH}
s_add_u32 s{sH1}, s{sH0}, 114688
s_lshr_b32 s{sB}, s{sW}, 1
s_add_u32 s{sA}, s{sA}, s{sB}
s_and_b32 s{sB}, s{sC2}, 14
s_and_b32 s{sD}, s{sW}, 1
s_add_u32 s{sB}, s{sB}, s{sD}
s_mul_i32 s{sXl}, s{sA}, 57344
s_lshl_b32 s{sD}, s{sB}, 12
s_add_u32 s{sXl}, s{sXl}, s{sD}
s_add_u32 s{sXl}, s{sXl}, {WS_X1}
s_mul_i32 s{sOs}, s{sA}, {32 * 896}
s_lshl_b32 s{sD}, s{sB}, 6
s_add_u32 s{sOs}, s{sOs}, s{sD}
s_lshl_b32 s{sD}, s{sB}, 7
s_add_u32 s{sD}, s{sD}, {WS_GB}""")
    for q in range(4): E.item(Item(f"buffer_load_dwordx4 {vr(vGB + 4 * q, 4)}, v{vGbo}, {sr(sWS,4)}, s{sD} offen" + (f" offset:{32 * q}" if q else "") + SC, vm_tag='gb'))
    E.wait_lds((('d', 15),))
    for j in range(5, 7): dma_now(dn_dma(j))
    wait_flags("POLL3", 3, sRow3)
    P('@STAMP@')
    for ks in range(28):
        if ks % 4 == 0 and ks: P(f"s_add_u32 s{sH0}, s{sH0}, 4096\ns_add_u32 s{sH1}, s{sH1}, 4096")
        for tt in range(2):
            E.item(Item(f"buffer_load_dwordx4 {ar(aHB + 8 * ks + 4 * tt, 4)}, v{vLn}, {sr(sWS,4)}, s{sH1 if tt else sH0} offen" + (f" offset:{1024 * (ks % 4)}" if ks % 4 else "") + SC, vm_tag=('hb', ks, tt)))
    for q in range(4): E.item(Item(f"buffer_load_dwordx4 {vr(vX1 + 4 * q, 4)}, v{vLn}, {sr(sWS,4)}, s{sXl} offen" + (f" offset:{1024 * q}" if q else "") + SC, vm_tag='x1l'))
    S = Sched(112, opt)
    for ks in range(28):
        for tt in range(2):
            for nt in range(2):
                n = 4 * ks + 2 * tt + nt; k = 2 * ks + nt
                acc = vr(vD + 16 * (2 * tt + nt), 16)
                S.mf[n] = f"{MF32} {acc}, {vr(vR2 + 4 * (k % NR2), 4)}, {ar(aHB + 8 * ks + 4 * tt, 4)}, {0 if ks == 0 else acc}"
                S.need[n] = (('d', k),); S.needvm[n] = (('hb', ks, tt),)
    for k in range(16, 56):
        g = 2 * (k - 16)
        assert k < NR2 or g > 4 * ((k - NR2) // 2) + 3
        S.fixed[g] += rd2(k)
    pre = E.out; E.out = []
    sg = S.emit(E, 10 ** 6, 3, None)
    E.out = pre + sg[0]
    P('@STAMP@')
    P(f"""v_add_u32 v{vRW}, s{sW8}, v{vLn}
v_add_u32 v{vRW}, 0x10000, v{vRW}
s_and_b32 s{sA}, s{sW}, 1
s_lshl_b32 s{sA}, s{sA}, 12
s_lshr_b32 s{sB}, s{sW}, 1
s_lshl_b32 s{sB}, s{sB}, 15
s_add_u32 s{sA}, s{sA}, s{sB}
s_add_u32 s{sA}, s{sA}, 0x10000
v_add_u32 v{vRR}, s{sA}, v{vLn}
s_nop 7""")
    for i in range(4):
        for q in range(4): P(f"ds_write_b128 v{vRW}, {vr(vD + 16 * i + 4 * q, 4)} offset:{(i & 1) * 4096 + (i >> 1) * 32768 + 1024 * q}")
    P("s_waitcnt lgkmcnt(0)\ns_barrier")
    for w in range(4):
        for q in range(4): P(f"ds_read_b128 {vr(vD + 16 * w + 4 * q, 4)}, v{vRR} offset:{w * 8192 + 1024 * q}")
    P("s_waitcnt vmcnt(0) lgkmcnt(8)")
    PL([f"v_add_f32 v{vD + k}, v{vD + k}, v{vD + 16 + k}" for k in range(16)])
    P("s_waitcnt lgkmcnt(0)")
    PL([f"v_add_f32 v{vD + 32 + k}, v{vD + 32 + k}, v{vD + 48 + k}" for k in range(16)])
    PL([f"v_add_f32 v{vD + k}, v{vD + k}, v{vD + 32 + k}" for k in range(16)])
    PL([f"v_fma_f32 v{vD + k}, v{vD + k}, v{vGB + k}, v{vX1 + k}" for k in range(16)])
    PL([f"v_cvt_pk_bf16_f32 v{vD + 16 + k}, v{vD + 2 * k}, v{vD + 2 * k + 1}" for k in range(8)])
    P("s_nop 1")
    for z in range(2):
        for e in range(2): P(f"v_permlane32_swap_b32 v{vD + 16 + 4 * z + e}, v{vD + 18 + 4 * z + e}")
    for z in range(2): P(f"buffer_store_dwordx4 {vr(vD + 16 + 4 * z, 4)}, v{vOo}, {sr(sOut,4)}, s{sOs} offen" + (" offset:32" if z else ""))
    out = E.out; E.out = []
    return out
```

```python
from asmlib import *
import math, re as _re

WS_MOD  = 0
WS_GA = 4096; WS_B0 = 4096 + 1792; WS_B1 = 4096 + 3584; WS_GB = 4096 + 5376
WS_FLAG = 16384
FRAGB   = 128 * 14 * 1024
WS_H2   = 1 << 20
WS_X1   = WS_H2 + (2 << 20)
WS_HH   = WS_X1 + (4 << 20)
WS_PART = WS_HH + (8 << 20)
WS_END  = WS_PART + 16 * FRAGB
WS_SIZE = 268435456
OOB = 0x40000000
DEF_PLAY = 1
PLAY = [(2048, FRAGB, 14336), (1 << 22, 1 << 18, 2048), (1 << 22, 2048, 32768)]

SLOT = [0, 65536, 32768, 98304]
LDS_MOD = 131072
LDS_SCR = 131072 + 8192
LDS_LN  = 131072 + 29184
LDS_TOT = 163840

vK = 1; vV = 5; vDK = 13; vDV = 21; vL = 29; vPS = 31; vTM = 33; vSTMP = 39; vT = 40; vNEG = 48; vGU = 56; vFst = 63; vQ = 64
vS = [128, 160]; vP = [192, 208]
vHB = 32; vMV = 64; vFT = 100; vDW = 108; vMod = 112; vX = 113; vWlo = 120; vXN = 128; vWhi = 240; vQT = 40
vOB = 64; vOA = [128, 160]; vST = [192, 208]; vWoA = 224; vDWo = 232; vL16 = 233; vRL = 236; vOT = 240
aO = 0; aQA = 0; aF = 128
sK = 4; sV = 8; sWq = 12; sWo = 16; sWS = 20; sW8 = 24; sKo = 25; sVo = 26; sCnt = 27; sThr = 28; sTmp = 29; sRet = 30; sPart = 32; sXo = 33
sGUl = 34; sT2 = 35
sX = 36; sDbg = 40; sGU = 44; sWm = 48; sC = 52; sW = 56; sHead = 57; sQb = 58; sA = 59; sB = 60; sD = 61; sE = 62; sF = 63
sDn = 12; sOut = 48
KA = 64
sRot = [92, 93, 94, 95, 100, 101, 35]

MF = "v_mfma_f32_16x16x32_bf16"
MF32 = "v_mfma_f32_32x32x16_bf16"
THR_LOG2 = 64
G = 64
POLLMAX = 1 << 14
def f2u(x):
    import struct
    return hex(struct.unpack('<I', struct.pack('<f', x))[0])

class Sched:
    def __init__(self, NG, opt):
        self.NG = NG
        self.mf = [None] * NG
        self.need = [()] * NG
        self.needvm = [()] * NG
        self.fixed = [[] for _ in range(NG + 1)]
        self.valu = [[] for _ in range(NG + 1)]
        self.post = [[] for _ in range(NG + 1)]
        self.free_nv = opt.get('free_nv', 0)
    def cost(self, g):
        c = sum((2 if isinstance(x, tuple) else x.cost) for x in self.fixed[g])
        c = max(0, c - self.free_nv)
        return c + sum(x.cost for x in self.valu[g]) + sum(x.cost for x in self.post[g])
    def spread(self, items, g0, g1):
        items = [Item(x) if isinstance(x, str) else x for x in items]
        tot = sum(x.cost for x in items)
        base = [self.cost(g) for g in range(g0, g1 + 1)]
        lo, hi = 0.0, 1000.0
        for _ in range(50):
            m = (lo + hi) / 2
            if sum(max(0, m - b) for b in base) >= tot: hi = m
            else: lo = m
        cum = 0.0; done = 0.0; k = 0
        for g in range(g0, g1 + 1):
            cum += max(0, hi - base[g - g0])
            while k < len(items) and (done + items[k].cost / 2 <= cum + 1e-6 or g == g1):
                self.valu[g].append(items[k]); done += items[k].cost; k += 1
        assert k == len(items)
    def stream(self, groups, cap):
        g = 0
        for e, items in groups:
            g = max(g, min(e, self.NG))
            for it in items:
                it = Item(it) if isinstance(it, str) else it
                while g < self.NG and self.cost(g) + it.cost > cap + (0.5 if it.cost > 1 else 0): g += 1
                self.valu[g].append(it)
    def place_reads(self, g0, reads, first_use, rd_last, dist):
        flat = [(it, first_use[f]) for f, r in enumerate(reads) for it in r]
        n = len(flat)
        pos = [min(g0 + (k * (rd_last + 1)) // n, flat[k][1] - dist) for k in range(n)]
        for k in range(n - 2, -1, -1):
            pos[k] = min(pos[k], pos[k + 1])
            if k + 2 < n and pos[k] == pos[k + 2]: pos[k] -= 1
        for k in range(n):
            self.fixed[max(pos[k], g0)].append(flat[k][0])
    def emit(self, E, G, minage, bar):
        segs = []
        for n in range(self.NG + 1):
            if n % G == 0 and n:
                segs.append(E.out); E.out = []
            E.time = n
            if n < self.NG and self.mf[n] is not None:
                E.wait_lds(self.need[n], minage)
                if self.needvm[n]: E.wait_vm(self.needvm[n])
                E.raw(self.mf[n])
            for it in self.fixed[n]:
                if isinstance(it, tuple):
                    bar(E, it)
                    if len(E.out) >= 2 and E.out[-1].startswith('s_waitcnt vm') and E.out[-2].startswith('s_waitcnt lgkm'):
                        a = E.out.pop(); b = E.out.pop(); E.raw(a + ' ' + b.split()[1])
                    E.raw("s_barrier")
                else:
                    if it.text.endswith('lds') and E.out and ' m0,' in E.out[-1]: E.raw('s_nop 0')
                    E.item(it)
            for it in self.valu[n] + self.post[n]: E.item(it, minage)
        segs.append(E.out); E.out = []
        return segs

def xlane_reduce(op, a, t):
    return [Item(f"v_mov_b32 v{t}, v{a}"), Item("s_nop 1", cost=2), Item(f"v_permlane32_swap_b32 v{a}, v{t}"), Item(f"{op} v{a}, v{a}, v{t}"),
            Item(f"v_mov_b32 v{t}, v{a}"), Item("s_nop 1", cost=2), Item(f"v_permlane16_swap_b32 v{a}, v{t}"), Item(f"{op} v{a}, v{a}, v{t}")]
def xlane_multi(op, regs, tmps):
    r = []
    for sw in ('32', '16'):
        r += [f"v_mov_b32 v{t}, v{a}" for a, t in zip(regs, tmps)] + ["s_nop 1"]
        r += [f"v_permlane{sw}_swap_b32 v{a}, v{t}" for a, t in zip(regs, tmps)]
        r += [f"{op} v{a}, v{a}, v{t}" for a, t in zip(regs, tmps)]
    return r
def srd(d, plo, off, size):
    if off is None: r = [f"s_mov_b32 s{d}, s{plo}", f"s_mov_b32 s{d+1}, s{plo+1}"]
    else: r = [f"s_add_u32 s{d}, s{plo}, {off}", f"s_addc_u32 s{d+1}, s{plo+1}, 0"]
    r.append(size if isinstance(size, str) else f"s_mov_b32 s{d+2}, {size}")
    r.append(f"s_mov_b32 s{d+3}, 0x20000")
    return "\n".join(r)

def gen(opt=None):
    opt = opt or {}
    SH = opt.get('shift', 12)
    RD_LAST = opt.get('rd_last', 55)
    MINAGE = opt.get('minage', 6)
    DIST = opt.get('dist', 10)
    NPRE = opt.get('npre', 4)
    SC = ' sc1'
    P_C, P_H, P_Q = PLAY[opt.get('play', DEF_PLAY)]
    NPH = 78
    NG = NPH * G + SH
    S_ = Sched(NG, opt)
    mf = S_.mf; fixed = S_.fixed; valu = S_.valu; post = S_.post; spread = S_.spread
    stamps = opt.get('stamps')
    nst = [0]; streg = [255]
    def stamp_lines():
        if stamps is None: return []
        k = nst[0]; nst[0] += 1
        return ["s_memtime s[96:97]", "s_memrealtime s[98:99]", "s_waitcnt lgkmcnt(0)", f"v_writelane_b32 v{streg[0]}, s96, {2 * k}", f"v_writelane_b32 v{streg[0]}, s98, {2 * k + 1}"]

    def phase_kind(j):
        if j < 7: return ('W', j)
        if j == 7: return ('K', 0)
        if j <= 69: return ('K', (j - 6) // 2) if j % 2 == 0 else ('V', (j - 9) // 2)
        if j == 70: return ('V', 31)
        return ('O', j - 71)
    def slot_of(j):
        if j <= 69: return j % 4
        return {70: 3, 71: 2, 72: 0, 73: 1, 74: 3, 75: 2, 76: 0, 77: 1}[j]
    def dma_seg(j):
        if j < 4: return None
        if j <= 69: return j - 3
        return {70: 68, 71: 67, 72: 69, 73: 70, 74: 71, 75: 72, 76: 73, 77: 74}[j]
    N0 = lambda j: G * j + SH
    dmod = opt.get('dma_mod', '')

    def dma_items(j):
        kind, t = phase_kind(j); sl = SLOT[slot_of(j)]
        its = []
        for q in range(8):
            pre = []
            if q % 4 == 0: pre.append(f"s_add_u32 m0, s{sW8}, {sl + (q // 4) * 4096}")
            imm = (q % 4) * 1024
            off = f" offset:{imm}" if imm else ""
            if kind == 'K':
                ld = f"buffer_load_dwordx4 v{vDK + q}, {sr(sK,4)}, s{sKo} offen{off}{dmod} lds"
            elif kind == 'V':
                ld = f"buffer_load_dwordx4 v{vDV + q}, {sr(sV,4)}, s{sVo} offen{off}{dmod} lds"
            elif kind == 'W':
                pre.append(f"s_add_u32 s{sTmp}, s{sRot[t]}, {2 * q * 8192 - imm}" if q else f"s_mov_b32 s{sTmp}, s{sRot[t]}")
                ld = f"buffer_load_dwordx4 v{vDW + (q & 1) + 2 * (q >> 2)}, {sr(sWq,4)}, s{sTmp} offen{off} lds"
            else:
                pre.append(f"s_mov_b32 s{sTmp}, {8 * q * 896 + (0 if opt.get('wo_same') else 128 * t) - imm}")
                ld = f"buffer_load_dwordx4 v{vDWo}, {sr(sWo,4)}, s{sTmp} offen{off} lds"
            aft = []
            if q == 7 and kind == 'K': aft.append(f"s_add_u32 s{sKo}, s{sKo}, 32768")
            if q == 7 and kind == 'V': aft.append(f"s_add_u32 s{sVo}, s{sVo}, 32768")
            its.append((pre, Item(ld, vm_tag=('tile', j), cost=opt.get('dma_cost', 1)), aft))
        return its
    GU_SLOT = [131072, 98304, 32768, 0, 65536, 131072, 98304]
    def gu_dma(c):
        its = []
        for q in range(7):
            pre = []
            if q == 0: pre.append(f"s_mov_b32 s{sTmp}, {(0 if opt.get('gu_same') else c) * 64 * 3584}")
            if q % 4 == 0: pre.append(f"s_add_u32 m0, s{sGUl}, {GU_SLOT[c] + (q // 4) * 4096}")
            imm = (q % 4) * 1024
            off = f" offset:{imm}" if imm else ""
            its.append((pre, Item(f"buffer_load_dwordx4 v{vGU + q}, {sr(sGU,4)}, s{sTmp} offen{off} lds", vm_tag=('gu', c)), []))
        return its

    Qr = lambda s, qh: vQ + 8 * s + 4 * qh
    Sr = lambda b, kb, qh: vS[b] + (2 * kb + qh) * 4
    Pr = lambda b, qh, ks: vP[b] + 8 * qh + 4 * ks
    last_write = {}
    first_read = {}
    for j in range(NPH):
        kind, t = phase_kind(j); sl = SLOT[slot_of(j)]
        if kind in 'WV': order = [((dt, ks), qh) for dt in range(16) for qh in range(2) for ks in range(2)]
        elif kind == 'K': order = [((kb, s), qh) for kb in range(4) for qh in range(2) for s in range(8)]
        else:
            if t == 0: order = [((nt, ks), qh) for ks in range(8) for nt in range(4) for qh in range(2)]
            else: order = [((nt, ks), qh) for nt in range(4) for qh in range(2) for ks in range(8)]
        fidx = {}; reads = []; first = []
        started = set()
        for p, (key, qh) in enumerate(order):
            n = N0(j) + p
            if key not in fidx:
                fi = len(fidx); fidx[key] = fi; f = aF + 4 * fi; tag = ('f', j, fi)
                if kind in 'WV':
                    dt, ks = key
                    base = (vV if kind == 'V' else vWlo if sl < 65536 else vWhi) + (dt & 7)
                    assert kind == 'W' or sl >= 65536
                    o = (sl % 65536) + 32 * ks * 512 + (dt >> 3) * 256
                    rd = [f"ds_read_b64_tr_b16 {ar(f,2)}, v{base} offset:{o}", f"ds_read_b64_tr_b16 {ar(f+2,2)}, v{base} offset:{o + (16 if kind == 'V' else 4) * 512}"]
                elif kind == 'K':
                    kb, s = key
                    o = (0 if t == 0 else sl) + kb * 8192 + (s >> 2) * 256
                    rd = [f"ds_read_b128 {ar(f,4)}, v{vK + (s & 3)} offset:{o}"]
                else:
                    nt, ks = key
                    base = vWoA + nt + (4 if sl >= 65536 else 0)
                    o = (sl % 65536) + 32 * ks * 128
                    rd = [f"ds_read_b64_tr_b16 {ar(f,2)}, v{base} offset:{o}", f"ds_read_b64_tr_b16 {ar(f+2,2)}, v{base} offset:{o + 16 * 128}"]
                reads.append([Item(x, lds_tag=tag) for x in rd]); first.append(n)
            fi = fidx[key]; f = aF + 4 * fi
            accname = (key[0], qh)
            isfirst = accname not in started; started.add(accname)
            if kind == 'W':
                dt, ks = key
                acc = ar(aQA + 8 * dt + 4 * qh, 4)
                mf[n] = f"{MF} {acc}, {ar(f,4)}, {vr(vHB + 16 * (t % 2) + 8 * qh + 4 * ks, 4)}, {0 if (t == 0 and isfirst) else acc}"
            elif kind == 'K':
                kb, s = key
                acc = vr(Sr(t % 2, kb, qh), 4)
                c = acc if not isfirst else (0 if t < 2 else vr(vNEG + 4 * qh, 4))
                mf[n] = f"{MF} {acc}, {ar(f,4)}, {vr(Qr(s, qh), 4)}, {c}"
                first_read.setdefault((j, s, qh), n)
            elif kind == 'V':
                dt, ks = key
                acc = ar(aO + 8 * dt + 4 * qh, 4)
                mf[n] = f"{MF} {acc}, {ar(f,4)}, {vr(Pr(t % 2, qh, ks), 4)}, {0 if (t == 0 and isfirst) else acc}"
            else:
                nt, ks = key
                acc = vr(vOA[t % 2] + 8 * nt + 4 * qh, 4)
                mf[n] = f"{MF} {acc}, {ar(f,4)}, {vr(vOB + 8 * ks + 4 * qh, 4)}, {0 if isfirst else acc}"
                first_read.setdefault((j, ks, qh), n)
            last_write[(j,) + accname] = n
            S_.need[n] = (('f', j, fi),)
        fixed[G * j].append(('BAR', j))
        S_.place_reads(G * j, reads, first, RD_LAST, DIST)
    DMA0 = opt.get('dma0', 5); DMAST = opt.get('dma_step', 7)
    def put_dma(S, its, g0, step):
        for q, (pre, it, aft) in enumerate(its):
            g = g0 + q * step
            for k, x in enumerate(pre): S.fixed[g - len(pre) + k].append(Item(x))
            S.fixed[g].append(it)
            for x in aft: S.fixed[g + 1].append(Item(x))
    for j in range(4, NPH): put_dma(S_, dma_items(j), G * dma_seg(j) + DMA0, DMAST)
    put_dma(S_, gu_dma(0) + gu_dma(1), G * 75 + 4, 4)
    put_dma(S_, gu_dma(2), G * 76 + DMA0, DMAST)
    put_dma(S_, gu_dma(3), G * 77 + DMA0, 5)

    HZ = 4
    def mod_reads(c):
        return [Item(f"ds_read_b128 {vr(vMV + 16 * ks + 4 * q, 4)}, v{vMod} offset:{(2 * c + ks) * 128 + 16 * (q & 1) + (3584 if q < 2 else 0)}", lds_tag=('m', c, ks)) for ks in range(2) for q in range(4)]
    def h_items(c):
        its = []
        for ks in range(2):
            mv = vMV + 16 * ks
            for qh in range(2):
                hb = vHB + 16 * (c % 2) + 8 * qh + 4 * ks
                xr = vXN + 4 * (qh * 14 + 2 * c + ks)
                for e in range(8):
                    its.append(Item(f"v_fma_mix_f32 v{vFT + e}, v{xr + e // 2}, v{mv + e}, v{mv + 8 + e} op_sel:[{e % 2},0,0] op_sel_hi:[1,0,0]", need_lds=((('m', c, ks),) if e == 0 else ())))
                its += [Item(f"v_cvt_pk_bf16_f32 v{hb + q}, v{vFT + 2 * q}, v{vFT + 2 * q + 1}") for q in range(4)]
        return its
    fixed[0][1:1] = mod_reads(0)
    spread(h_items(0), 1, SH - 2)
    for c in range(1, 7):
        for q, it in enumerate(mod_reads(c)): fixed[N0(c - 1) + q].append(it)
        spread(h_items(c), N0(c - 1) + 9, N0(c) - 3)
    for s in range(8):
        for qh in range(2):
            q = Qr(s, qh); a0 = aQA + 8 * (2 * s) + 4 * qh; tb = 48 + 8 * qh
            its = [f"v_accvgpr_read_b32 v{tb + 4 * u + e}, a{a0 + 8 * u + e}" for u in range(2) for e in range(4)]
            its += [f"v_cvt_pk_bf16_f32 v{q}, v{tb}, v{tb + 1}", f"v_cvt_pk_bf16_f32 v{q + 2}, v{tb + 4}, v{tb + 5}",
                   f"v_cvt_pk_bf16_f32 v{q + 1}, v{tb + 2}, v{tb + 3}", f"v_cvt_pk_bf16_f32 v{q + 3}, v{tb + 6}, v{tb + 7}", "s_nop 0",
                   f"v_permlane32_swap_b32 v{q}, v{q + 2}", f"v_permlane32_swap_b32 v{q + 1}, v{q + 3}", "s_nop 0",
                   f"v_permlane16_swap_b32 v{q}, v{q + 2}", f"v_permlane16_swap_b32 v{q + 1}, v{q + 3}"]
            lo = last_write[(6, 2 * s + 1, 1)] + HZ + 4 * qh
            hi = min(lo + 3, first_read[(7, s, qh)] - 3)
            assert hi >= lo, (s, qh, lo, hi)
            spread(its, lo, hi)
    spread([f"v_subrev_u32 v{vK + q}, {SLOT[3]}, v{vK + q}" for q in range(4)], G * 7 + RD_LAST + 1, G * 8 - 1)

    def sm_items(b, sub=False):
        pairs = [(kb, qh, h) for kb in range(4) for qh in range(2) for h in range(2)]
        def ex(k):
            kb, qh, h = pairs[k]; s = Sr(b, kb, qh) + 2 * h
            r = []
            if sub: r += [Item(f"v_add_f32 v{s + e}, v{vNEG + 4 * qh}, v{s + e}") for e in range(2)]
            r += [Item(f"v_exp_f32 v{vT + 2 * (k % 4) + e}, v{s + e}", cost=2) for e in range(2)]
            return r
        def fin(k):
            kb, qh, h = pairs[k]; a = vT + 2 * (k % 4); ps = vPS + qh
            cv = Item(f"v_cvt_pk_bf16_f32 v{Pr(b, qh, kb // 2) + 2 * (kb % 2) + h}, v{a}, v{a + 1}")
            if kb == 0 and h == 0: return [Item(f"v_add_f32 v{ps}, v{a}, v{a + 1}"), cv]
            return [Item(f"v_add_f32 v{ps}, v{a}, v{ps}"), cv, Item(f"v_add_f32 v{ps}, v{a + 1}, v{ps}")]
        seq = ex(0)
        for k in range(1, 16):
            e = ex(k); f = fin(k - 1)
            seq += e[:-1] + f[:1] + e[-1:] + f[1:]
        seq += fin(15)
        return seq
    def max_items(b, kbs, dst, init):
        its = []
        for qh in range(2):
            regs = [Sr(b, kb, qh) + r for kb in kbs for r in range(4)]
            d = dst + qh
            if init:
                its.append(Item(f"v_max3_f32 v{d}, v{regs[0]}, v{regs[1]}, v{regs[2]}")); regs = regs[3:]
            while len(regs) >= 2:
                its.append(Item(f"v_max3_f32 v{d}, v{d}, v{regs[0]}, v{regs[1]}")); regs = regs[2:]
            if regs: its.append(Item(f"v_max_f32 v{d}, v{d}, v{regs[0]}"))
        return its
    jK = lambda t: 7 if t == 0 else 2 * t + 6
    jV = lambda t: 70 if t == 31 else 2 * t + 9

    o0 = vOT
    ep_addr = [
        f"v_and_b32 v{o0}, 63, v0",
        f"v_lshlrev_b32 v{vL16}, 4, v{o0}",
        f"v_add_u32 v{vL16+1}, {P_Q}, v{vL16}",
        f"v_lshrrev_b32 v{o0+1}, 3, v{o0}",
        f"v_lshrrev_b32 v{o0+2}, 6, v0",
        f"v_lshl_add_u32 v{o0+1}, v{o0+2}, 6, v{o0+1}",
        f"v_mul_u32_u24 v{o0+1}, 896, v{o0+1}",
        f"v_lshrrev_b32 v{o0+2}, 3, v{o0}",
        f"v_and_b32 v{o0+2}, 6, v{o0+2}",
        f"v_and_b32 v{o0+3}, 7, v{o0}",
        f"v_xor_b32 v{o0+2}, v{o0+2}, v{o0+3}",
        f"v_lshl_add_u32 v{vDWo}, v{o0+2}, 4, v{o0+1}",
        f"v_lshrrev_b32 v{o0+1}, 2, v{o0}",
        f"v_lshlrev_b32 v{o0+1}, 7, v{o0+1}",
        f"v_bfe_u32 v{o0+2}, v{o0}, 3, 2",
        f"v_lshl_add_u32 v{o0+1}, v{o0+2}, 5, v{o0+1}",
        f"v_and_b32 v{o0+2}, 3, v{o0}",
        f"v_lshl_add_u32 v{vWoA}, v{o0+2}, 3, v{o0+1}",
    ] + [f"v_xor_b32 v{vWoA+q}, {32 * q}, v{vWoA}" for q in range(1, 4)] + [f"v_add_u32 v{vWoA+4+q}, 0x10000, v{vWoA+q}" for q in range(4)]
    for q in range(7):
        ep_addr += [f"v_add_u32 v{o0+1}, {64 * q}, v{o0}", f"v_mul_u32_u24 v{o0+1}, 4682, v{o0+1}", f"v_lshrrev_b32 v{o0+1}, 16, v{o0+1}",
                    f"v_mul_u32_u24 v{o0+1}, 3360, v{o0+1}", f"v_add3_u32 v{vGU+q}, v{o0+1}, v{vL16}, {'s%d' % sE if q >= 4 else 0}"]
    ep_addr.insert(0, f"s_mov_b32 s{sE}, 4096")
    ep_addr += [f"v_mov_b32 v{o0+1}, {OOB}", "v_cmp_eq_u32 vcc, 0, v0", f"v_mov_b32 v{o0+2}, 0", f"v_mov_b32 v{o0+3}, 1",
                f"v_cndmask_b32 v{vFst}, v{o0+1}, v{o0+2}, vcc"]
    spread(ep_addr, N0(7) + 16, N0(7) + 50)
    fixed[N0(8) + 2].append(Item(f"buffer_store_dword v{o0+2}, v{vFst}, {sr(sWS,4)}, s{sF} offen{SC}", vm_tag='fz'))
    fixed[G * 11 + 2].append(Item(f"s_and_b32 s{sE}, s2, 15\ns_lshl_b32 s{sE}, s{sE}, 2", cost=2))
    fixed[G * 11 + 3].append(Item(f"buffer_atomic_add v{o0+3}, v{vFst}, {sr(sDbg,4)}, s{sE} offen offset:128{SC}", need_vm=('fz',)))
    chk = [f"v_min_u32 v{o0}, 16, v0", f"v_mov_b32 v{o0+1}, 56", f"v_cmp_gt_u32 vcc, 16, v0", f"v_lshlrev_b32 v{o0}, 2, v{o0}", f"v_mov_b32 v{o0+2}, {OOB}",
           f"v_cndmask_b32 v{o0+1}, v{o0+1}, 16, vcc", "v_cmp_gt_u32 vcc, 64, v0", "s_nop 1",
           f"v_cndmask_b32 v{o0}, v{o0+2}, v{o0}, vcc", f"v_cndmask_b32 v{o0+1}, 0, v{o0+1}, vcc"]
    CH0 = N0(65) + 4
    for k, x in enumerate(chk): fixed[CH0 + k].append(Item(x))
    CHKLD = f"buffer_load_dword v{o0+2}, v{o0}, {sr(sDbg,4)}, 0 offen offset:128{SC}"
    fixed[CH0 + len(chk) + 1].append(Item(CHKLD, vm_tag='chk'))
    fixed[N0(69) + 4].append(Item(f"v_cmp_ne_u32 vcc, v{o0+1}, v{o0+2}", need_vm=('chk',)))
    fixed[N0(69) + 6].append(Item("s_cbranch_vccnz CHK_SLOW\nCHK_BACK:"))

    MAP = opt.get('map', 2)
    NTE = opt.get('nte', 3)
    if NTE:
        vTa = 244; vTd = 247; u = 248; NID = 128 >> MAP; T0 = 13 - NTE
        LW = -(-1792 // (NTE * NID)); RW = -(-448 // (NTE * NID // 2)); LD = -(-12544 // (NTE * 1024))
        BLK = [NID * LW * 128, RW * (NID // 2) * 3584, 1024 * LD * 128]
        def oob(d, n): return [f"v_sub_u32 v{u+1}, {n - 1}, v{u}", f"v_and_b32 v{u+1}, {OOB}, v{u+1}", f"v_add_u32 v{d}, v{d}, v{u+1}"]
        ta = [f"v_and_b32 v{u}, 63, v0",
              f"s_and_b32 s{sA}, s{sQb}, {(32 >> MAP) - 1}", f"s_lshl2_add_u32 s{sB}, s{sA}, s{sW}", f"s_mul_i32 s{sB}, s{sB}, {LW * 128}", f"s_sub_u32 s{sB}, s{sB}, {T0 * BLK[0]}",
              f"v_lshl_add_u32 v{vTa}, v{u}, 7, s{sB}"] + oob(vTa, LW)
        ta += [f"s_and_b32 s{sB}, s{sW}, 1", f"s_lshl1_add_u32 s{sB}, s{sA}, s{sB}", f"s_mul_i32 s{sB}, s{sB}, {RW * 3584}", f"s_sub_u32 s{sB}, s{sB}, {T0 * BLK[1]}",
               f"v_lshrrev_b32 v{u+1}, 2, v{u}", f"v_mul_u32_u24 v{u+1}, 3584, v{u+1}", f"v_and_b32 v{u+2}, 3, v{u}", f"v_mul_u32_u24 v{u+2}, 72, v{u+2}",
               f"v_add3_u32 v{vTa+1}, v{u+1}, v{u+2}, s{sB}"] + oob(vTa + 1, 4 * RW)
        ta += [f"s_lshl2_add_u32 s{sB}, s2, s{sW}", f"s_mul_i32 s{sB}, s{sB}, {LD * 128}", f"s_sub_u32 s{sB}, s{sB}, {T0 * BLK[2]}",
               f"v_lshl_add_u32 v{vTa+2}, v{u}, 7, s{sB}"] + oob(vTa + 2, LD)
        ta += [f"s_mul_i32 s{sA}, s{sHead}, 224", f"s_cmp_lt_u32 s{sW}, 2\ns_cselect_b32 s{sWm}, s{KA+12}, s{KA+14}\ns_cselect_b32 s{sWm+1}, s{KA+13}, s{KA+15}",
               f"s_add_u32 s{sWm}, s{sWm}, s{sA}\ns_addc_u32 s{sWm+1}, s{sWm+1}, 0", f"s_sub_u32 s{sWm+2}, {448 * 3584}, s{sA}",
               f"s_mov_b32 s{sC}, s{KA+16}", f"s_mov_b32 s{sC+1}, s{KA+17}", f"s_mov_b32 s{sC+2}, {1792 * 896}"]
        for k, x in enumerate(ta): fixed[N0(9) + 12 + k].append(Item(x))
        for sg in range(12, 64, 4):
            for k, r in enumerate((sWo, sWm, sC)):
                if str(k) not in opt.get('tsel', '012'): continue
                fixed[G * sg + (2, 30, 66)[k]].append(Item(f"buffer_load_dword v{vTd}, v{vTa + k}, {sr(r,4)}, 0 offen", vm_tag='tch', cost=0))
                fixed[G * sg + (3, 31, 67)[k]].append(Item(f"v_add_u32 v{vTa + k}, {BLK[k]}, v{vTa + k}", cost=0))

    vCT = 252; NCL = 5
    KVD = opt.get('kvd', 0)
    if KVD:
        vKp = 251; u = 248; NW = 128 >> MAP; LK = 512 // NW
        ta = [f"v_and_b32 v{u}, 63, v0", f"s_and_b32 s{sA}, s{sQb}, {(32 >> MAP) - 1}", f"s_lshl2_add_u32 s{sB}, s{sA}, s{sW}", f"s_mul_i32 s{sB}, s{sB}, {LK * 128}",
              f"s_add_u32 s{sB}, s{sB}, {4 * 32768 + KVD * 65536}", f"v_lshl_add_u32 v{vKp}, v{u}, 7, s{sB}",
              f"v_sub_u32 v{u+1}, {LK - 1}, v{u}", f"v_and_b32 v{u+1}, {OOB}, v{u+1}", f"v_add_u32 v{vKp}, v{vKp}, v{u+1}"]
        for k, x in enumerate(ta): fixed[N0(10) + 12 + k].append(Item(x))
        for sg in range(12, 64, 4):
            fixed[G * sg + 16].append(Item(f"buffer_load_dword v{vCT+2}, v{vKp}, {sr(sK,4)}, 0 offen", vm_tag='tch', cost=0))
            fixed[G * sg + 51].append(Item(f"buffer_load_dword v{vCT+2}, v{vKp}, {sr(sV,4)}, 0 offen", vm_tag='tch', cost=0))
            fixed[G * sg + 52].append(Item(f"v_add_u32 v{vKp}, 65536, v{vKp}", cost=0))
    if opt.get('ct', 1) >= 2:
        for sg in range(12, 64, 4): fixed[G * sg + 44].append(Item(f"global_load_dword v{vCT+2}, v[{vCT}:{vCT+1}], off", vm_tag='tch', cost=0))
    for t in range(32):
        sdone = N0(jK(t)) + G - 1
        pv0 = N0(jV(t))
        if t == 0:
            spread(max_items(0, [0, 1, 2], vTM, True), N0(7) + 47 + HZ, sdone + 1)
            its = max_items(0, [3], vTM, False)
            for qh in range(2):
                its += xlane_reduce("v_max_f32", vTM + qh, vTM + 2)
                its.append(Item(f"v_sub_f32 v{vNEG + 4 * qh}, 0, v{vTM + qh}"))
            its += sm_items(0, sub=True)
            its += [Item(f"v_mov_b32 v{vL + qh}, v{vPS + qh}") for qh in range(2)]
            spread(its, sdone + HZ, pv0 - 2)
            spread([f"v_mov_b32 v{vNEG + 4 * qh + q}, v{vNEG + 4 * qh}" for qh in range(2) for q in range(1, 4)], pv0, pv0 + 10)
            continue
        its = sm_items(t % 2, sub=(t == 1))
        its.append(Item(f"v_max_f32 v{vTM}, v{vPS}, v{vPS + 1}"))
        its.append(Item(f"v_cmp_nge_f32 vcc, s{sThr}, v{vTM}"))
        spread(its, sdone + 2, pv0 - 3)
        post[pv0 - 1].append(Item(f"s_cbranch_vccnz @RARE{t % 2}@\n@BACK@:"))
        valu[pv0] += [Item(f"v_add_f32 v{vL + qh}, v{vL + qh}, v{vPS + qh}") for qh in range(2)]

    pv = N0(70)
    its = []
    for qh in range(2):
        its += xlane_reduce("v_add_f32", vL + qh, vTM) + [Item(f"v_rcp_f32 v{vRL + qh}, v{vL + qh}", cost=2)]
    spread(its, pv + 1, pv + 10)
    for ks in range(8):
        for qh in range(2):
            tb = vOT + 8 * qh
            its = [f"v_accvgpr_read_b32 v{tb + 4 * u + e}, a{aO + 8 * (2 * ks + u) + 4 * qh + e}" for u in range(2) for e in range(4)]
            its += [f"v_cvt_pk_bf16_f32 v{vOB + 8 * ks + 4 * qh + q}, v{tb + 2 * q}, v{tb + 2 * q + 1}" for q in range(4)]
            lo = pv + 12 + (2 * ks + qh) * 6; hi = lo + 5
            assert lo >= last_write[(70, 2 * ks + 1, 1)] + HZ and hi <= first_read[(71, ks, 0)] - 2, (ks, lo, hi)
            spread(its, lo, hi)
    for c in range(7):
        A = vOA[c % 2]; ST = vST[c % 2]
        k = 0
        for a in range(2):
            for qh in range(2):
                its = []
                if a == 0 and qh == 0: its.append(Item(f"s_add_u32 s{sXo}, s{sPart}, {c * P_C}"))
                src = [A + 8 * (2 * a + u) + 4 * qh + e for u in range(2) for e in range(4)]
                st = ST + 8 * a + 4 * qh
                its += [Item(f"v_mul_f32 v{x}, v{vRL + qh}, v{x}") for x in src]
                its += [Item(f"v_cvt_pk_bf16_f32 v{st + q}, v{src[2 * q]}, v{src[2 * q + 1]}") for q in range(4)]
                its.append(Item(f"buffer_store_dwordx4 {vr(st, 4)}, v{vL16 + qh}, {sr(sWS,4)}, s{sXo} offen" + (" offset:1024" if a else "") + opt.get('st_mod', SC), vm_tag=('st', c)))
                lw = last_write[(71 + c, 2 * a + 1, qh)]
                if c == 0: lo = N0(72) + HZ + 8 * k; hi = lo + 7
                else: lo = last_write[(71 + c, 2 * a + 1, 0)] + HZ + 14 * qh + (10 if c == 1 and a == 0 else 0); hi = lo + 13 - (5 if c == 1 and a == 0 else 0)
                assert lo >= lw + HZ
                if hi >= NG:
                    valu[NG].append(Item("s_nop 7")); valu[NG] += its
                else:
                    spread(its, lo, hi)
                k += 1

    E = Emitter()
    P = E.raw
    def PL(l):
        for x in l: E.raw(x)
    def poll(name, load, cmp_, dst):
        P(f"""s_mov_b32 s{sE}, {POLLMAX}
{name}_L:
{load}
s_waitcnt vmcnt(0)
{cmp_}
s_sub_u32 s{sE}, s{sE}, 1
s_cbranch_scc1 {name}_D
s_cmp_eq_u64 vcc, -1
s_cbranch_scc1 {name}_D
s_sleep 1
s_branch {name}_L
{name}_D:""")
    P("s_cmp_ge_u32 s2, 256\ns_cbranch_scc1 K_END")
    PL(stamp_lines())
    W = vL; L = vL + 1; t0 = vFT; t1 = t0 + 1; t2 = t0 + 2; t3 = t0 + 3; t4 = t0 + 4
    pW = 64; pC = 92; pA = 40; pH = 48; pT = 56
    NA = opt.get('na', 4)
    code_touch = f"""s_getpc_b64 s[{sWS}:{sWS+1}]
K_PC:
s_lshr_b32 s{sA}, s2, 3
v_min_u32 v{vCT}, {NCL - 1}, v{L}
s_lshl2_add_u32 s{sA}, s{sA}, s{sW}
v_lshlrev_b32 v{vCT}, 14, v{vCT}
v_lshl_add_u32 v{vCT}, s{sA}, 7, v{vCT}
v_min_u32 v{vCT}, K_END-K_PC, v{vCT}
v_mov_b32 v{vCT+1}, s{sWS+1}
v_add_co_u32 v{vCT}, vcc, s{sWS}, v{vCT}
s_nop 1
v_addc_co_u32 v{vCT+1}, vcc, 0, v{vCT+1}, vcc
global_load_dword v{vCT+2}, v[{vCT}:{vCT+1}], off
""" if opt.get('ct', 1) else ""
    P(f"""s_load_dwordx8 s[{KA+16}:{KA+23}], s[0:1], 64
s_load_dwordx16 s[{KA}:{KA+15}], s[0:1], 0
s_load_dwordx4 s[{KA+24}:{KA+27}], s[0:1], 96
v_lshrrev_b32 v{W}, 6, v0
v_and_b32 v{L}, 63, v0
v_readfirstlane_b32 s{sW}, v{W}
@CODE@s_bfe_u32 s{sHead}, s2, {(MAP - 1) | ((4 - MAP) << 16)}
s_bfe_u32 s{sA}, s2, {3 | (MAP << 16)}
s_lshl_b32 s{sHead}, s{sHead}, {MAP}
s_lshr_b32 s{sQb}, s2, {3 + MAP}
s_add_u32 s{sHead}, s{sHead}, s{sA}
s_and_b32 s{sA}, s2, {(1 << (MAP - 1)) - 1}
s_lshl_b32 s{sA}, s{sA}, {5 - MAP}
s_add_u32 s{sQb}, s{sQb}, s{sA}
s_lshl2_add_u32 s{sB}, s{sHead}, s{sQb}
s_mul_i32 s{sA}, s{sB}, 37
s_lshr_b32 s{sA}, s{sA}, 8
s_mul_i32 s{sA}, s{sA}, 7
s_sub_u32 s{sB}, s{sB}, s{sA}
s_mul_i32 s{sRot[0]}, s{sB}, {128 * opt.get('rot', 1)}
v_lshrrev_b32 v{t0}, 2, v0
v_and_b32 v{t1}, 3, v0
v_mul_u32_u24 v{t2}, 5376, v{t0}
v_lshl_add_u32 v{t2}, v{t1}, 4, v{t2}
v_lshlrev_b32 v{t3}, 1, v{t0}
v_lshrrev_b32 v{t0}, 2, v{L}
v_mul_u32_u24 v{vX}, 896, v{t0}
v_lshrrev_b32 v{t0}, 4, v{L}
v_sub_u32 v{t0}, 0, v{t0}
v_xor_b32 v{t0}, v{t0}, v{L}
v_and_b32 v{t0}, 3, v{t0}
v_lshl_add_u32 v{vX}, v{t0}, 4, v{vX}
v_add_u32 v{vX+4}, {16 * 896}, v{vX}
v_lshrrev_b32 v{t0}, 5, v{L}
v_and_b32 v{t1}, 31, v{L}
s_lshl_b32 s{sW8}, s{sW}, 13
s_lshl2_add_u32 s{sA}, s{sQb}, s{sW}
s_mul_i32 s{sXo}, s{sA}, {32 * 896}""".replace('@CODE@', code_touch))
    for c in range(1, 7): P(f"s_add_u32 s{sRot[c]}, s{sRot[c-1]}, 128\ns_cmp_eq_u32 s{sRot[c]}, 896\ns_cselect_b32 s{sRot[c]}, 0, s{sRot[c]}")
    P(f"""s_lshl_b32 s{sD}, s2, 6
s_cmp_ge_u32 s2, 84
s_waitcnt lgkmcnt(0)
{srd(sWm, KA + 20, None, 448 * 5376)}
{srd(sC, KA + 18, None, 896)}
{srd(sX, KA + 0, None, 2048 * 896)}
s_cbranch_scc1 PRO_A""")
    for i in range(7): P(f"buffer_load_ushort v{pC + i}, v{t3}, {sr(sC,4)}, 0 offen" + (f" offset:{128 * i}" if i else ""))
    for i in range(7):
        P(f"buffer_load_dwordx4 {vr(pW + 4 * i, 4)}, v{t2}, {sr(sWm,4)}, s{sD} offen")
        if i < 6: P(f"s_add_u32 s{sD}, s{sD}, {64 * 5376}")
    P("PRO_A:")
    XB = [65536, 32768, 98304, 131072 + 4096]
    xl = lambda s, qh: XB[(2 * s + qh) // 8] + ((2 * s + qh) % 8) * 1024
    def x_dma(s):
        for qh in range(2):
            P(f"s_add_u32 m0, s{sW8}, {xl(s, qh) - 64 * (s & 1)}")
            P(f"s_add_u32 s{sTmp}, s{sXo}, s{sRot[s // 2]}" if (s & 1) == 0 and qh == 0 else "s_nop 0")
            E.item(Item(f"buffer_load_dwordx4 v{vX + 4 * qh}, {sr(sX,4)}, s{sTmp} offen" + (" offset:64" if s & 1 else "") + " lds", vm_tag=('x', s)))
    assert NA % 2 == 0
    for s in range(NA): x_dma(s)
    P(f"""{srd(sWS, KA + 26, opt.get('wsoff'), WS_SIZE - opt.get('wsoff', 0))}
{srd(sDbg, KA + 24, None, 256)}""")
    if opt.get('pst'): PL(stamp_lines())
    P("s_cmp_ge_u32 s2, 84\ns_cbranch_scc1 PRO_B")
    P(f"s_mov_b32 s{sD}, {f2u(-math.log2(math.e))}")
    PL([f"v_mov_b32 v{pA + e}, 0" for e in range(8)])
    P(f"""v_lshrrev_b32 v{t2}, 4, v0
v_and_b32 v{t3}, 3, v0
v_lshlrev_b32 v{t2}, 7, v{t2}
v_lshl_add_u32 v{t2}, v{t3}, 5, v{t2}
v_add_u32 v{t2}, {LDS_SCR}, v{t2}
v_lshlrev_b32 v{t3}, 10, v{t0}
v_lshl_add_u32 v{t3}, v{t1}, 2, v{t3}
v_add_u32 v{t3}, {LDS_SCR}, v{t3}
s_waitcnt vmcnt({7 + 2 * NA})""")
    PL([f"v_lshlrev_b32 v{pC + i}, 16, v{pC + i}" for i in range(7)])
    PL([f"v_mul_f32 v{pT + i}, s{sD}, v{pC + i}" for i in range(7)])
    PL([f"v_exp_f32 v{pT + i}, v{pT + i}" for i in range(7)])
    PL([f"v_add_f32 v{pT + i}, 1.0, v{pT + i}" for i in range(7)])
    PL([f"v_rcp_f32 v{pT + i}, v{pT + i}" for i in range(7)])
    PL([f"v_mul_f32 v{pC + i}, v{pC + i}, v{pT + i}" for i in range(7)])
    PL([f"v_cvt_pk_bf16_f32 v{pC + i}, v{pC + i}, 0" for i in range(7)])
    PL([f"v_lshlrev_b32 v{pH + i}, 16, v{pC + i}" for i in range(7)])
    for i in range(7):
        P(f"s_waitcnt vmcnt({6 + 2 * NA - i})")
        PL([f"v_dot2c_f32_bf16 v{pA + e}, v{pW + 4 * i + e // 2}, v{(pH if e % 2 else pC) + i}" for e in range(8)])
    P("s_nop 2")
    for sh in (4, 8): PL([f"v_add_f32_dpp v{pA + e}, v{pA + e}, v{pA + e} row_ror:{sh} row_mask:0xf bank_mask:0xf" for e in range(8)])
    P(f"""ds_write_b128 v{t2}, {vr(pA, 4)}
ds_write_b128 v{t2}, {vr(pA + 4, 4)} offset:16
s_mul_i32 s{sD}, s2, 4682
s_lshr_b32 s{sD}, s{sD}, 16
s_cmp_lg_u32 s{sW}, 0
s_waitcnt lgkmcnt(0)
s_barrier
s_cbranch_scc1 PRO_B""")
    PL([f"ds_read_b32 v{pA + k}, v{t3} offset:{128 * k}" for k in range(8)])
    P(f"""s_cmp_eq_u32 s{sD}, 1
s_cselect_b32 s{sA}, 1.0, 0
s_cmp_eq_u32 s{sD}, 4
s_cselect_b32 s{sA}, 1.0, s{sA}
s_cmp_lt_u32 s{sD}, 2
s_cselect_b32 s{sB}, {f2u(math.log2(math.e) / 16)}, 1.0
s_cselect_b32 s{sD}, 0, 512
s_lshl_b32 s{sE}, s2, 7
s_add_u32 s{sD}, s{sD}, s{sE}
s_lshl_b32 s{sE}, s2, 2
s_cmp_lt_u32 s2, 28
s_cselect_b32 s{sE}, s{sE}, 192
v_lshlrev_b32 v{t2}, 30, v{t0}
v_lshl_add_u32 v{t2}, v{t1}, 2, v{t2}
v_cmp_eq_u32 vcc, 0, v{L}
v_mov_b32 v{t3}, {OOB}
v_mov_b32 v{pT}, 1
v_cndmask_b32 v{t3}, v{t3}, 0, vcc
s_waitcnt lgkmcnt(0)
v_add_f32 v{pA}, v{pA}, v{pA+1}
v_add_f32 v{pA+2}, v{pA+2}, v{pA+3}
v_add_f32 v{pA+4}, v{pA+4}, v{pA+5}
v_add_f32 v{pA+6}, v{pA+6}, v{pA+7}
v_add_f32 v{pA}, v{pA}, v{pA+2}
v_add_f32 v{pA+4}, v{pA+4}, v{pA+6}
v_add_f32 v{pA}, v{pA}, v{pA+4}
v_mov_b32 v{pA+1}, v{pA}
s_nop 1
v_permlane32_swap_b32 v{pA}, v{pA+1}
v_add_f32 v{pA}, v{pA}, v{pA+1}
v_cvt_pk_bf16_f32 v{pA}, 0, v{pA}
v_add_f32 v{pA}, s{sA}, v{pA}
v_cvt_pk_bf16_f32 v{pA}, 0, v{pA}
v_mul_f32 v{pA}, s{sB}, v{pA}
buffer_store_dword v{pA}, v{t2}, {sr(sWS,4)}, s{sD} offen{SC}
s_waitcnt vmcnt(0)
buffer_atomic_add v{pT}, v{t3}, {sr(sDbg,4)}, s{sE} offen{SC}
PRO_B:""")
    if opt.get('pst'): PL(stamp_lines())
    for s in range(NA, 14): x_dma(s)
    P(f"""s_lshl_b32 s{sD}, s{sHead}, 9
{srd(sWq, KA + 6, f's{sD}', f's_sub_u32 s{sWq+2}, {448 * 8192}, s{sD}')}
v_lshl_add_u32 v{t2}, v{W}, 4, v{t0}
v_lshlrev_b32 v{t2}, 13, v{t2}
v_lshlrev_b32 v{t4}, 1, v{t0}
v_xor_b32 v{t4}, v{t4}, v{t1}
v_lshl_add_u32 v{vDW}, v{t4}, 4, v{t2}
v_xor_b32 v{vDW+1}, 64, v{vDW}
v_xor_b32 v{vDW+2}, 128, v{vDW}
v_xor_b32 v{vDW+3}, 192, v{vDW}
s_lshl_b32 s{sE}, s{sRot[0]}, 1""")
    for c in range(7): P(f"s_lshl_b32 s{sRot[c]}, s{sRot[c]}, 12")
    def w_list(j):
        r = []
        for pre, it, aft in dma_items(j): r.append((pre, it))
        return r
    def w_one(x):
        for y in x[0]: P(y)
        E.item(x[1])
    for x in w_list(0): w_one(x)
    if opt.get('pst'): PL(stamp_lines())
    P(f"""s_mov_b32 s{sKo}, 0
s_mov_b32 s{sVo}, 0
s_mov_b32 s{sThr}, {hex((127 + THR_LOG2) << 23)}
s_lshl_b32 s{sA}, s{sQb}, 2
s_add_u32 s{sA}, s{sA}, s{sW}
s_mul_i32 s{sA}, s{sA}, {2 * P_Q}
s_mul_i32 s{sB}, s{sHead}, {P_H}
s_add_u32 s{sPart}, s{sA}, s{sB}
s_add_u32 s{sPart}, s{sPart}, {WS_PART}
s_lshl_b32 s{sD}, s{sHead}, 20
{srd(sK, KA + 2, f's{sD}', 0x100000)}
{srd(sV, KA + 4, f's{sD}', 0x100000)}
s_mul_i32 s{sD}, s{sHead}, {256 * 896}
{srd(sWo, KA + 8, f's{sD}', 256 * 896)}
s_and_b32 s{sA}, s{sW}, 1
s_mul_i32 s{sD}, s{sA}, {32 * 3584}
s_mul_i32 s{sB}, s{sHead}, 224
s_add_u32 s{sD}, s{sD}, s{sB}
s_mul_i32 s{sGUl}, s{sA}, 7168
s_cmp_lt_u32 s{sW}, 2
s_cselect_b32 s{sGU}, s{KA+12}, s{KA+14}
s_cselect_b32 s{sGU+1}, s{KA+13}, s{KA+15}
s_cselect_b32 s{sA}, 0, 14464
s_add_u32 s{sGUl}, s{sGUl}, s{sA}
{srd(sGU, sGU, f's{sD}', f's_sub_u32 s{sGU+2}, {448 * 3584}, s{sD}')}
s_lshl_b32 s{sF}, s{sQb}, 7
s_lshl_b32 s{sA}, s{sHead}, 2
s_add_u32 s{sF}, s{sF}, s{sA}
s_add_u32 s{sF}, s{sF}, {WS_FLAG}""")
    P(f"""v_and_b32 v{t2}, 15, v{L}
v_lshrrev_b32 v{t3}, 4, v{L}
v_lshlrev_b32 v{vMod}, 5, v{t3}
s_add_u32 s{sE}, s{sE}, {LDS_MOD}
v_add_u32 v{vMod}, s{sE}, v{vMod}
v_xor_b32 v{t3}, v{t3}, v{t2}
v_lshlrev_b32 v{t2}, 9, v{t2}
v_lshl_add_u32 v{t3}, v{t3}, 4, v{t2}
v_add_u32 v{t3}, {SLOT[3]}, v{t3}""")
    for q in range(4): P(f"v_xor_b32 v{vK + q}, {64 * q}, v{t3}")
    P(f"""v_lshrrev_b32 v{t2}, 2, v{L}
v_lshlrev_b32 v{t3}, 9, v{t2}
v_and_b32 v{t2}, 7, v{t2}
v_lshl_add_u32 v{t3}, v{t2}, 5, v{t3}
v_and_b32 v{t2}, 3, v{L}
v_lshl_add_u32 v{t3}, v{t2}, 3, v{t3}
v_lshrrev_b32 v{t2}, 4, v{L}
v_lshl_add_u32 v{t2}, v{t2}, 11, v{t3}""")
    for q in range(8):
        P(f"v_xor_b32 v{vV + q}, {0x10000 + 32 * q}, v{t3}")
        P(f"v_xor_b32 v{vWlo + q}, {32 * q}, v{t2}")
        P(f"v_xor_b32 v{vWhi + q}, {0x10000 + 32 * q}, v{t2}")
    P(f"v_lshlrev_b32 v{t2}, 13, v{W}")
    P(f"v_lshl_add_u32 v{t2}, v{t0}, 9, v{t2}")
    P(f"v_xor_b32 v{t3}, v{t1}, v{t0}")
    P(f"v_lshl_add_u32 v{t3}, v{t3}, 4, v{t2}")
    for q in range(8): P(f"v_xor_b32 v{vDK + q}, {(2 * q) * 16 + (q // 4) * 4096}, v{t3}")
    P(f"v_lshl_add_u32 v{t3}, v{t4}, 4, v{t2}")
    for q in range(8): P(f"v_xor_b32 v{vDV + q}, {(q % 4) * 64 + (q // 4) * 4096}, v{t3}")
    if opt.get('pst'): PL(stamp_lines())
    S1 = 40; S2 = 42; TT = 44; XR = 114
    P(f"""v_bfe_u32 v{t2}, v{L}, 2, 2
v_sub_u32 v{t2}, 0, v{t2}
v_lshrrev_b32 v{t3}, 4, v{L}
v_xor_b32 v{t2}, v{t2}, v{t3}
v_and_b32 v{t2}, 3, v{t2}
v_and_b32 v{t3}, 15, v{L}
v_lshlrev_b32 v{t3}, 6, v{t3}
v_lshl_add_u32 v{t2}, v{t2}, 4, v{t3}
v_add_u32 v{XR}, s{sW8}, v{t2}
v_add_u32 v{XR+1}, 0x10000, v{XR}
v_add_u32 v{XR+2}, 0x20000, v{XR}
s_mov_b32 s{sA}, 0x3f803f80
s_mov_b32 s{sB}, {f2u(1 / 448)}
s_mov_b32 s{sD}, 0xffff0000""")
    PL([f"v_mov_b32 v{S1 + k}, 0" for k in range(4)])
    def x_read(s):
        for qh in range(2):
            o = xl(s, qh)
            E.item(Item(f"ds_read_b128 {vr(vXN + 4 * (14 * qh + s), 4)}, v{XR + o // 65536} offset:{o % 65536}", lds_tag=('xr', s), need_vm=(('x', s),)))
    XLA = 2
    for s in range(XLA): x_read(s)
    if opt.get('pst'): PL(stamp_lines())
    for s in range(14):
        if s + XLA < 14: x_read(s + XLA)
        E.wait_lds((('xr', s),))
        for d in range(4):
            for qh in range(2):
                x = vXN + 4 * (14 * qh + s) + d
                P(f"v_dot2c_f32_bf16 v{S1 + qh}, s{sA}, v{x}\nv_dot2c_f32_bf16 v{S2 + qh}, v{x}, v{x}")
    if opt.get('pst'): PL(stamp_lines())
    wl = [x for j in range(1, NPRE) for x in w_list(j)]
    if wl: w_one(wl.pop(0))
    P("s_nop 2")
    PL(xlane_multi("v_add_f32", [S1, S1 + 1, S2, S2 + 1], [TT, TT + 1, TT + 2, TT + 3]))
    for qh in range(2): P(f"v_mul_f32 v{S1 + qh}, s{sB}, v{S1 + qh}\nv_mul_f32 v{S2 + qh}, s{sB}, v{S2 + qh}")
    for qh in range(2): P(f"v_fma_f32 v{S2 + qh}, -v{S1 + qh}, v{S1 + qh}, v{S2 + qh}")
    for qh in range(2): P(f"v_max_f32 v{S2 + qh}, 0, v{S2 + qh}")
    for qh in range(2): P(f"v_add_f32 v{S2 + qh}, {f2u(1e-5)}, v{S2 + qh}")
    for qh in range(2): P(f"v_rsq_f32 v{S2 + qh}, v{S2 + qh}")
    P("s_nop 0")
    for qh in range(2): P(f"v_mul_f32 v{S1 + qh}, -v{S1 + qh}, v{S2 + qh}")
    for s in range(14):
        for qh in range(2):
            if wl: w_one(wl.pop(0))
            x = vXN + 4 * (14 * qh + s)
            for d in range(4): P(f"v_lshlrev_b32 v{TT+2*d}, 16, v{x+d}\nv_and_b32 v{TT+2*d+1}, s{sD}, v{x+d}")
            for e in range(8): P(f"v_fma_f32 v{TT+e}, v{TT+e}, v{S2+qh}, v{S1+qh}")
            for d in range(4): P(f"v_cvt_pk_f16_f32 v{x+d}, v{TT+2*d}, v{TT+2*d+1}")
    assert not wl
    PL(stamp_lines())
    P(f"""s_cmp_lg_u32 s{sW}, 0
s_cbranch_scc1 PRO_C
v_min_u32 v{t2}, 27, v{L}
v_lshlrev_b32 v{t2}, 2, v{t2}
v_lshlrev_b32 v{t3}, 4, v{L}""")
    poll("POLL0", f"buffer_load_dword v{t4}, v{t2}, {sr(sDbg,4)}, 0 offen{SC}", f"v_cmp_ne_u32 vcc, 0, v{t4}", t4)
    for q in range(4): P(f"buffer_load_dwordx4 {vr(vMV + 4 * q, 4)}, v{t3}, {sr(sWS,4)}, 0 offen" + (f" offset:{1024 * q}" if q else "") + SC)
    P(f"""v_cmp_gt_u32 vcc, 48, v{L}
v_add_u32 v{t3}, {LDS_MOD}, v{t3}
v_add_u32 v{t2}, 1792, v{t3}
v_cndmask_b32 v{t2}, v{t2}, v{t3}, vcc""")
    for cp in range(2):
        for q in range(4):
            if cp == 0: P(f"s_waitcnt vmcnt({3 - q})")
            P(f"ds_write_b128 v{t2 if q == 1 else t3}, {vr(vMV + 4 * q, 4)} offset:{1024 * q + 1792 * cp + (1792 if q >= 2 else 0)}")
    P("s_waitcnt lgkmcnt(0)\nPRO_C:")
    for j in range(NPRE, 4):
        for x in w_list(j): w_one(x)
    head = E.out; E.out = []

    def bar(E, it):
        j = it[1]
        if j > 0: E.wait_lds((('f', j - 1, 31),))
        E.wait_vm((('tile', j),))
    segs = S_.emit(E, G, MINAGE, bar)

    import tail
    tl = tail.gen_tail(E, opt, poll, stamp_lines, gu_dma, put_dma, GU_SLOT)

    clean = lambda l: [x.replace('@RARE0@', 'R').replace('@RARE1@', 'R').replace('@BACK@', 'B') for x in l]
    best = (0, 0)
    for a in range(len(segs)):
        b = a
        while b + 4 < len(segs) and segs[b] == segs[b + 4]: b += 1
        ntrip = (b + 4 - a) // 4
        if ntrip > best[1]: best = (a, ntrip)
    a, ntrip = best
    out = list(head)
    stubs = []
    cnt = [0]
    def put(seg, k=None):
        if stamps is not None and k in stamps: out.extend(stamp_lines())
        for x in seg:
            if '@RARE' in x:
                cnt[0] += 1
                par = x[x.index('@RARE') + 5]
                stubs.extend([f"K_STUB{cnt[0]}:", f"s_call_b64 {sr(sRet,2)}, K_RARE{par}", f"s_branch K_BACK{cnt[0]}"])
                x = x.replace(f'@RARE{par}@', f"K_STUB{cnt[0]}")
            x = x.replace('@BACK@', f"K_BACK{cnt[0]}")
            out.append(x)
    for k, s in enumerate(segs[:a]): put(s, k)
    out.extend(stamp_lines())
    out.append(f"s_mov_b32 s{sCnt}, {ntrip - 1}")
    if opt.get('align'): out.append(f".p2align {opt['align']}")
    out.append("K_LOOP:")
    abl = [_re.compile(x) for x in opt.get('ablate', [])]
    for s in segs[a:a + 4]: put([x for x in s if not any(r.search(x) for r in abl)])
    out += [f"s_sub_u32 s{sCnt}, s{sCnt}, 1", "s_cbranch_scc0 K_LOOP"]
    rest = segs[a + 4 * ntrip:]
    if stamps is not None: out.append(f"v_mov_b32 v{vSTMP}, v255"); streg[0] = vSTMP
    out.extend(stamp_lines())
    abl2 = [_re.compile(x) for x in opt.get('ablate2', [])]
    for k, s in enumerate(rest): put([x for x in s if not any(r.search(x) for r in abl2)], k + len(segs) - len(rest))
    tl = [y for x in tl for y in (stamp_lines() if x == '@STAMP@' else [x])]
    out += tl
    errs = check_hazards(clean(head + [x for s in segs for x in s] + tl), 'main')
    out.append("K_FIN:")
    if stamps is not None:
        out += ["s_waitcnt vmcnt(0)"] + stamp_lines()
        out += [f"s_lshl_b32 s{sA}, s2, 2", f"s_add_u32 s{sA}, s{sA}, s{sW}", f"s_lshl_b32 s{sA}, s{sA}, 8", f"s_add_u32 s{sA}, s{sA}, {WS_END}",
                "v_and_b32 v1, 63, v0", "v_lshlrev_b32 v1, 2, v1", f"buffer_store_dword v{vSTMP}, v1, {sr(sWS,4)}, s{sA} offen"]
    out += ["K_END:", "s_endpgm"]
    out += stubs
    E.out = ["CHK_SLOW:"]
    poll("POLLC", CHKLD, f"v_cmp_eq_u32 vcc, v{o0+1}, v{o0+2}", o0 + 2)
    out += E.out + ["s_branch CHK_BACK"]; E.out = []
    for b in range(2):
        r = [f"K_RARE{b}:", "s_nop 15"]
        r += [x.text for x in max_items(b, [0, 1, 2, 3], vTM, True)]
        for qh in range(2):
            r += [x.text for x in xlane_reduce("v_max_f32", vTM + qh, vTM + 2)]
            r += [f"v_max_f32 v{vTM + qh}, 0, v{vTM + qh}"]
        for qh in range(2):
            r += [f"v_sub_f32 v{vTM + 2 + qh}, 0, v{vTM + qh}", f"v_exp_f32 v{vTM + 2 + qh}, v{vTM + 2 + qh}"]
        for qh in range(2):
            regs = [Sr(bb, kb, qh) + e for bb in range(2) for kb in range(4) for e in range(4)] + [vNEG + 4 * qh + e for e in range(4)]
            r += [f"v_sub_f32 v{x}, v{x}, v{vTM + qh}" for x in regs]
            r += [f"v_mul_f32 v{vL + qh}, v{vL + qh}, v{vTM + 2 + qh}"]
        for q in range(0, 128, 8):
            r += [f"v_accvgpr_read_b32 v{vT + e}, a{aO + q + e}" for e in range(8)]
            r += [f"v_mul_f32 v{vT + e}, v{vT + e}, v{vTM + 2 + e // 4}" for e in range(8)]
            r += [f"v_accvgpr_write_b32 a{aO + q + e}, v{vT + e}" for e in range(8)]
        r += [x.text for x in sm_items(b)]
        r += ["s_nop 4", f"s_setpc_b64 {sr(sRet,2)}"]
        errs += check_hazards(r, f'rare{b}')
        out += r
    info = dict(loop_start=a, ntrip=ntrip, nseg=len(segs), nstamps=nst[0])
    return out, errs, info
```

```python
from fused import *

vDn = 8; vGUr = 9; vDnr = 12; vP1 = 6; vP3 = 19; vXo = 20; vMo = 22; vX1s = 24; vMask = 26; vFld = 28; vScrW = 29; vScrR = 30; vLn = 31
vTt = 32
vGbo = 1; vOo = 2; vRW = 3; vRR = 4; vFv = 5
sR2 = 92; sC2 = 93
vXr = 40; vGA = 64; vB1 = 80; vB0 = 96; vAC = 112; vPL = 128
aH2 = 0; aR = 128; NR1 = 32; vG = 64; vGT = 176; vHH = 192
aHB = 0; vGB = 64; vR2 = 80; NR2 = 28; vD = 192; vX1 = 40

def gen_tail(E, opt, poll, stamp_lines, gu_dma, put_dma, GU_SLOT):
    SC = ' sc1'
    P_C, P_H, P_Q = PLAY[opt.get('play', DEF_PLAY)]
    P = E.raw
    def PL(l):
        for x in l: E.raw(x)
    def dma_now(its):
        for pre, it, aft in its:
            for x in pre: P(x)
            if E.out[-1].startswith('s_add_u32 m0'): P('s_nop 0')
            E.item(it)
    def flag(stage):
        P(f"v_mov_b32 v{vFv}, {stage}\nbuffer_store_dword v{vFv}, v{vFst}, {sr(sWS,4)}, s{sF} offen{SC}")
    def wait_flags(name, stage, srow):
        P(f"s_cmp_lg_u32 s{sW}, 0\ns_cbranch_scc1 {name}_X")
        poll(name, f"buffer_load_dword v{vTt}, v{vFld}, {sr(sWS,4)}, s{srow} offen{SC}", f"v_cmp_le_u32 vcc, {stage}, v{vTt}", vTt)
        P(f"{name}_X:\ns_barrier")
    a, b, c, d, e_ = vTt, vTt + 1, vTt + 2, vTt + 3, vTt + 4
    P('@STAMP@')
    sRow = sKo; sRow3 = sVo; sPo = sPart; sH2s = sXo; sX1s = sCnt; sXs = sThr
    P(f"""v_and_b32 v{a}, 63, v0
v_lshlrev_b32 v{vLn}, 4, v{a}
v_lshrrev_b32 v{b}, 3, v{a}
v_and_b32 v{c}, 7, v{a}
v_cmp_gt_u32 vcc, 56, v{a}
v_mov_b32 v{e_}, {OOB}
s_mul_i32 s{sA}, s{sW}, 14
v_cndmask_b32 v{e_}, v{e_}, 0, vcc
v_cndmask_b32 v{vMask}, 0, 1.0, vcc
v_lshl_add_u32 v{d}, v{c}, 4, v{e_}
v_lshl_add_u32 v{vP3}, v{b}, 9, v{d}""")
    for p in range(2):
        P(f"""v_add_u32 v{vMo+p}, s{sA}, v{b}
s_add_u32 s{sA}, s{sA}, 7
v_lshrrev_b32 v{vXo+p}, 3, v{vMo+p}
v_lshl_add_u32 v{vP1+p}, v{vXo+p}, {P_C.bit_length() - 1}, v{d}
v_and_b32 v{vXo+p}, 7, v{vMo+p}
v_lshl_add_u32 v{vP1+p}, v{vXo+p}, 8, v{vP1+p}
v_and_b32 v{vXo+p}, 3, v{vMo+p}
v_lshrrev_b32 v{vMo+p}, 2, v{vMo+p}
v_lshl_add_u32 v{vMo+p}, v{vMo+p}, 3, v{vXo+p}
v_lshl_add_u32 v{vX1s+p}, v{vMo+p}, 9, v{d}
v_mul_u32_u24 v{vXo+p}, 896, v{c}
v_lshl_add_u32 v{vXo+p}, v{vMo+p}, 3, v{vXo+p}
v_add_u32 v{vXo+p}, v{vXo+p}, v{e_}
v_lshl_add_u32 v{vMo+p}, v{vMo+p}, 4, v{e_}""")
    P(f"""s_lshl_b32 s{sA}, s{sQb}, 4
s_add_u32 s{sA}, s{sA}, s{sHead}
s_mul_i32 s{sXs}, s{sA}, {8 * 896}
s_mov_b32 s{sB}, {WS_GA}
s_mov_b32 s{sD}, {WS_B1}""")
    for p in range(2):
        for hf in range(2):
            E.item(Item(f"buffer_load_dwordx2 {vr(vXr + 4 * p + 2 * hf, 2)}, v{vXo+p}, {sr(sX,4)}, s{sXs} offen" + (" offset:32" if hf else ""), vm_tag='t2e'))
            E.item(Item(f"buffer_load_dwordx4 {vr(vGA + 8 * p + 4 * hf, 4)}, v{vMo+p}, {sr(sWS,4)}, s{sB} offen" + (" offset:64" if hf else "") + SC, vm_tag='t2e'))
            E.item(Item(f"buffer_load_dwordx4 {vr(vB0 + 8 * p + 4 * hf, 4)}, v{vMo+p}, {sr(sWS,4)}, s{sB} offen offset:{1792 + 64 * hf}" + SC, vm_tag='t2e'))
            E.item(Item(f"buffer_load_dwordx4 {vr(vB1 + 8 * p + 4 * hf, 4)}, v{vMo+p}, {sr(sWS,4)}, s{sD} offen" + (" offset:64" if hf else "") + SC, vm_tag='t2e'))
    E.wait_lds((('f', 77, 31),))
    E.wait_vm((('st', 6),))
    P("s_barrier")
    flag(1)
    P('@STAMP@')
    dma_now(gu_dma(4))
    P(f"""s_lshr_b32 s{sB}, s{sA}, 1
s_mul_i32 s{sPo}, s{sB}, {P_Q}
s_and_b32 s{sB}, s{sA}, 1
s_lshl_b32 s{sB}, s{sB}, 7
s_add_u32 s{sPo}, s{sPo}, s{sB}
s_add_u32 s{sPo}, s{sPo}, {WS_PART}
s_lshr_b32 s{sB}, s{sA}, 2
s_and_b32 s{sA}, s{sA}, 3
s_lshl_b32 s{sA}, s{sA}, 7
s_mul_i32 s{sH2s}, s{sB}, 28672
s_lshl_b32 s{sX1s}, s{sH2s}, 1
s_add_u32 s{sX1s}, s{sX1s}, s{sA}
s_add_u32 s{sX1s}, s{sX1s}, {WS_X1}
s_add_u32 s{sH2s}, s{sH2s}, s{sA}
s_mul_i32 s{sB}, s{sW}, {14 * 512}
s_add_u32 s{sH2s}, s{sH2s}, s{sB}
s_add_u32 s{sH2s}, s{sH2s}, {WS_H2}
s_lshl_b32 s{sRow}, s{sQb}, 7
s_add_u32 s{sRow}, s{sRow}, {WS_FLAG}
s_and_b32 s{sR2}, s2, 7
s_bfe_u32 s{sC2}, s2, 0x10003
s_lshl1_add_u32 s{sR2}, s{sR2}, s{sC2}
s_lshr_b32 s{sC2}, s2, 4
s_lshl_b32 s{sRow3}, s{sR2}, 7
s_add_u32 s{sRow3}, s{sRow3}, {WS_FLAG}
v_and_b32 v{vFld}, 15, v{a}
v_lshlrev_b32 v{vFld}, 2, v{vFld}
v_lshlrev_b32 v{vScrR}, 3, v{c}
v_add_u32 v{vScrR}, {LDS_LN}, v{vScrR}
s_lshl_b32 s{sA}, s{sW}, 6
v_add_u32 v{vScrW}, s{sA}, v{vScrR}""")
    P(f"""v_bfe_u32 v{b}, v{a}, 2, 2
v_lshrrev_b32 v{c}, 5, v{a}
v_lshl_add_u32 v{b}, v{c}, 2, v{b}
v_and_b32 v{c}, 3, v{a}
v_lshlrev_b32 v{c}, 3, v{c}
v_bfe_u32 v{d}, v{a}, 4, 1
v_mul_u32_u24 v{vGUr}, 224, v{b}
v_mul_u32_u24 v{e_}, 14464, v{d}
v_add3_u32 v{vGUr}, v{vGUr}, v{e_}, v{c}
v_add_u32 v{vGUr+1}, 0x10000, v{vGUr}
v_add_u32 v{vGUr+2}, 0x20000, v{vGUr}
v_lshl_add_u32 v{c}, v{d}, 5, v{c}
v_lshl_add_u32 v{c}, v{b}, 7, v{c}
v_bfe_u32 v{d}, v{a}, 3, 1
v_lshl_add_u32 v{c}, v{d}, 6, v{c}
v_add_u32 v{vDnr}, s{sW8}, v{c}
v_xor_b32 v{vDnr+1}, 64, v{vDnr}
v_add_u32 v{vDnr+2}, 0x10000, v{vDnr}
v_add_u32 v{vDnr+3}, 0x10000, v{vDnr+1}
v_add_u32 v{vDnr+4}, 0x20000, v{vDnr}
v_add_u32 v{vDnr+5}, 0x20000, v{vDnr+1}
v_lshrrev_b32 v{b}, 3, v{a}
v_mul_u32_u24 v{b}, 896, v{b}
v_bfe_u32 v{c}, v{a}, 4, 1
v_lshlrev_b32 v{c}, 2, v{c}
v_and_b32 v{d}, 7, v{a}
v_xor_b32 v{c}, v{c}, v{d}
v_lshl_add_u32 v{vDn}, v{c}, 4, v{b}
v_lshrrev_b32 v{b}, 5, v{a}
v_lshlrev_b32 v{vGbo}, 4, v{b}
v_and_b32 v{c}, 31, v{a}
v_mul_u32_u24 v{c}, 896, v{c}
v_add_u32 v{vOo}, v{c}, v{vGbo}
s_lshr_b32 s{sA}, s{sC2}, 1
s_lshl_b32 s{sA}, s{sA}, 7
s_mul_i32 s{sB}, s{sW}, {448 * 896}
s_add_u32 s{sA}, s{sA}, s{sB}
{srd(sDn, KA + 16, f's{sA}', f's_sub_u32 s{sDn+2}, {1792 * 896}, s{sA}')}
{srd(sOut, KA + 22, None, 2048 * 896)}
s_mov_b32 s{sA}, 0x3f80
s_mov_b32 s{sB}, 0x3f800000""")
    PL([f"v_mov_b32 v{vAC + k}, 0" for k in range(16)])
    wait_flags("POLL1", 1, sRow)
    P('@STAMP@')
    for h in range(16):
        for p in range(2):
            E.item(Item(f"buffer_load_dwordx4 {vr(vPL + 8 * h + 4 * p, 4)}, v{vP1+p}, {sr(sWS,4)}, s{sPo} offen" + SC, vm_tag=('pl', h)))
        if h < 15: P(f"s_add_u32 s{sPo}, s{sPo}, {P_H}")
    for h in range(16):
        E.wait_vm((('pl', h),))
        PL([f"v_dot2c_f32_bf16 v{vAC + k}, s{sB if k % 2 else sA}, v{vPL + 8 * h + k // 2}" for k in range(16)])
    P('@STAMP@')
    P(f"s_mov_b32 s{sD}, 0xffff0000")
    xt = vPL
    for k in range(16):
        P(f"v_and_b32 v{xt + k}, s{sD}, v{vXr + k // 2}" if k % 2 else f"v_lshlrev_b32 v{xt + k}, 16, v{vXr + k // 2}")
    PL([f"v_fma_f32 v{vAC + k}, v{vAC + k}, v{vGA + k}, v{xt + k}" for k in range(16)])
    for p in range(2):
        for hf in range(2):
            E.item(Item(f"buffer_store_dwordx4 {vr(vAC + 8 * p + 4 * hf, 4)}, v{vX1s+p}, {sr(sWS,4)}, s{sX1s} offen" + (" offset:2048" if hf else "") + SC, vm_tag='x1'))
    def tree(src, dst):
        PL([f"v_add_f32 v{dst + k}, v{src + 2 * k}, v{src + 2 * k + 1}" for k in range(8)])
        for w in (4, 2, 1): PL([f"v_add_f32 v{dst + k}, v{dst + k}, v{dst + k + w}" for k in range(w)])
    def wave_red(r, t):
        P(f"s_nop 1\nv_add_f32_dpp v{r}, v{r}, v{r} row_ror:8 row_mask:0xf bank_mask:0xf")
        PL(xlane_multi("v_add_f32", [r], [t]))
    m = xt + 32; q = xt + 33; w0 = xt + 16
    tree(vAC, w0); wave_red(w0, w0 + 1)
    P(f"v_mul_f32 v{m}, {f2u(1 / 112)}, v{w0}")
    PL([f"v_sub_f32 v{xt + k}, v{vAC + k}, v{m}" for k in range(16)])
    PL([f"v_mul_f32 v{xt + k}, v{xt + k}, v{xt + k}" for k in range(16)])
    tree(xt, w0)
    P(f"v_mul_f32 v{q}, v{vMask}, v{w0}")
    wave_red(q, w0 + 1)
    P(f"ds_write_b64 v{vScrW}, {vr(m, 2)}\ns_waitcnt lgkmcnt(0)\ns_barrier")
    for w in range(4): P(f"ds_read_b64 {vr(w0 + 2 * w, 2)}, v{vScrR}" + (f" offset:{64 * w}" if w else ""))
    P(f"""s_waitcnt lgkmcnt(0)
v_add_f32 v{m}, v{w0}, v{w0+2}
v_add_f32 v{q}, v{w0+4}, v{w0+6}
v_add_f32 v{w0+1}, v{w0+1}, v{w0+3}
v_add_f32 v{m}, v{m}, v{q}
v_add_f32 v{w0+5}, v{w0+5}, v{w0+7}
v_mul_f32 v{m}, 0.25, v{m}
v_add_f32 v{w0+1}, v{w0+1}, v{w0+5}
v_sub_f32 v{w0}, v{w0}, v{m}
v_sub_f32 v{w0+2}, v{w0+2}, v{m}
v_sub_f32 v{w0+4}, v{w0+4}, v{m}
v_sub_f32 v{w0+6}, v{w0+6}, v{m}
v_mul_f32 v{q}, v{w0}, v{w0}
v_fma_f32 v{q}, v{w0+2}, v{w0+2}, v{q}
v_fma_f32 v{q}, v{w0+4}, v{w0+4}, v{q}
v_fma_f32 v{q}, v{w0+6}, v{w0+6}, v{q}
v_mul_f32 v{w0+1}, {f2u(1 / 448)}, v{w0+1}
v_fma_f32 v{q}, v{q}, 0.25, v{w0+1}
v_add_f32 v{q}, {f2u(1e-5)}, v{q}
v_rsq_f32 v{q}, v{q}""".replace("0.25", f"s{sA}").replace("s_waitcnt lgkmcnt(0)", f"s_mov_b32 s{sA}, {f2u(0.25)}\ns_waitcnt lgkmcnt(0)"))
    PL([f"v_sub_f32 v{xt + k}, v{vAC + k}, v{m}" for k in range(16)])
    PL([f"v_mul_f32 v{vB1 + k}, v{vB1 + k}, v{q}" for k in range(16)])
    PL([f"v_fma_f32 v{xt + k}, v{xt + k}, v{vB1 + k}, v{vB0 + k}" for k in range(16)])
    PL([f"v_cvt_pk_bf16_f32 v{w0 + k}, v{xt + 2 * k}, v{xt + 2 * k + 1}" for k in range(8)])
    for p in range(2):
        E.item(Item(f"buffer_store_dwordx4 {vr(w0 + 4 * p, 4)}, v{vP3}, {sr(sWS,4)}, s{sH2s} offen" + (" offset:3584" if p else "") + SC, vm_tag='h2s'))
    E.lds_done = len(E.lds)

    NM0 = opt.get('nm0', 4); LA = opt.get('la1', 28); CAP = opt.get('cap1', 6)
    order = [(t, ks) for ks in range(4 * NM0) for t in range(7)] + [(t, ks) for t in range(7) for ks in range(4 * NM0, 28)]
    N1 = len(order)
    S = Sched(N1, opt)
    def rd1(k):
        t, ks = order[k]; c = ks // 4; sl = GU_SLOT[c]; f = aR + 4 * (k % NR1)
        o = sl % 65536 + (32 * ((ks >> 1) & 1) + 8 * (ks & 1)) * 224 + 32 * t
        return [Item(f"ds_read_b64_tr_b16 {ar(f,2)}, v{vGUr + sl // 65536} offset:{o}", lds_tag=('g', k)),
                Item(f"ds_read_b64_tr_b16 {ar(f+2,2)}, v{vGUr + sl // 65536} offset:{o + 16 * 224}", lds_tag=('g', k))]
    lw = {}
    for k, (t, ks) in enumerate(order):
        acc = vr(vG + 16 * t, 16)
        S.mf[k] = f"{MF32} {acc}, {ar(aR + 4 * (k % NR1), 4)}, {ar(aH2 + 4 * ks, 4)}, {0 if ks == 0 else acc}"
        S.need[k] = (('g', k),); S.needvm[k] = (('h2', ks),); lw[t] = k
    first6 = min(k for k, (t, ks) in enumerate(order) if ks // 4 == 6)
    B6 = first6 - opt.get('b6', 8)
    pos = {}; prev = -1
    for k in range(28, N1):
        g = max(k - LA, prev + 1, B6 if k >= first6 else 0)
        assert g <= k - 4 and g >= k - NR1 + 1, (k, g)
        pos[k] = g; prev = g
    free_after = sorted(set(range(2, NM0)))
    DN_SLOT = [GU_SLOT[c] for c in free_after] + [GU_SLOT[c] for c in range(NM0, 7)]
    NE = len(free_after)
    DN_SLOT += DN_SLOT[:2]
    def dn_dma(j):
        its = []
        for q in range(8):
            pre = []
            if q % 4 == 0: pre.append(f"s_add_u32 m0, s{sW8}, {DN_SLOT[j] + (q // 4) * 4096}")
            imm = (q % 4) * 1024
            pre.append(f"s_mov_b32 s{sTmp}, {(64 * j + 8 * q) * 896 - imm}")
            its.append((pre, Item(f"buffer_load_dwordx4 v{vDn}, {sr(sDn,4)}, s{sTmp} offen" + (f" offset:{imm}" if imm else "") + " lds", vm_tag=('dn', j)), []))
        return its
    bars = {}
    for c in range(1, NM0):
        g = pos[28 * c + 27] + 3
        bars[g] = ([('g', 28 * c + 27)], [('gu', 5)] if c == 1 else [])
        put_dma(S, gu_dma(6) if c == 1 else dn_dma(c - 2), g + 3, 2)
    assert B6 not in bars and B6 > max(bars)
    bars[B6] = ([], [('gu', 6)])
    for g in bars: S.fixed[g].insert(0, ('BAR', g))
    for k in range(28, N1): S.fixed[pos[k]] += rd1(k)
    ca_ = -2 * math.log2(math.e) * math.sqrt(2 / math.pi)
    groups = []
    for t in range(7):
        g0 = vG + 16 * t; its = []
        for hf in range(2):
            r = [g0 + 4 * hf + e for e in range(4)]; T = [vGT + 8 * hf + e for e in range(4)]
            its += [f"v_mul_f32 v{T[e]}, v{r[e]}, v{r[e]}" for e in range(4)]
            its += [f"v_fma_f32 v{T[e]}, v{T[e]}, s{sA}, v{vGT + 4}" for e in range(4)]
            its += [f"v_mul_f32 v{T[e]}, v{T[e]}, v{r[e]}" for e in range(4)]
            for e in range(4): its += [Item(f"v_exp_f32 v{T[e]}, v{T[e]}", cost=2), f"v_mul_f32 v{r[e]}, v{r[e]}, v{r[e] + 8}"]
            its += [f"v_add_f32 v{T[e]}, 1.0, v{T[e]}" for e in range(4)]
            its += [Item(f"v_rcp_f32 v{T[e]}, v{T[e]}", cost=2) for e in range(4)]
            its += [f"v_mul_f32 v{r[e]}, v{r[e]}, v{T[e]}" for e in range(4)]
            its += [f"v_cvt_pk_bf16_f32 v{vHH + 4 * t + 2 * hf + e}, v{r[2 * e]}, v{r[2 * e + 1]}" for e in range(2)]
        if t == 4: its.append(f"s_add_u32 s{sB}, s{sB}, 4096")
        its.append(Item(f"buffer_store_dwordx4 {vr(vHH + 4 * t, 4)}, v{vLn}, {sr(sWS,4)}, s{sB} offen" + (f" offset:{1024 * (t % 4)}" if t % 4 else "") + SC, vm_tag='hh'))
        groups.append((lw[t] + 4, its))
    S.stream(groups, CAP)
    E.time = -100
    for k in range(28):
        for it in rd1(k): E.item(it)
    P(f"""s_lshl_b32 s{sD}, s{sQb}, 2
s_add_u32 s{sD}, s{sD}, s{sW}
s_mul_i32 s{sB}, s{sD}, 114688
s_mul_i32 s{sA}, s{sHead}, 7168
s_add_u32 s{sB}, s{sB}, s{sA}
s_add_u32 s{sB}, s{sB}, {WS_HH}
s_mul_i32 s{sD}, s{sD}, 28672
s_add_u32 s{sD}, s{sD}, {WS_H2}
s_mov_b32 s{sA}, {f2u(ca_ * 0.044715)}
v_mov_b32 v{vGT + 4}, {f2u(ca_)}""")
    E.wait_both(('h2s',))
    P("s_barrier")
    flag(2)
    P('@STAMP@')
    dma_now(gu_dma(5))
    wait_flags("POLL2", 2, sRow)
    P('@STAMP@')
    for ks in range(28):
        if ks % 4 == 0 and ks: P(f"s_add_u32 s{sD}, s{sD}, 4096")
        E.item(Item(f"buffer_load_dwordx4 {ar(aH2 + 4 * ks, 4)}, v{vLn}, {sr(sWS,4)}, s{sD} offen" + (f" offset:{1024 * (ks % 4)}" if ks % 4 else "") + SC, vm_tag=('h2', ks)))
    def bar1(E, it):
        l, v = bars[it[1]]
        if l: E.wait_lds(l)
        if v: E.wait_vm(v)
    pre = E.out; E.out = []
    sg = S.emit(E, 10 ** 6, opt.get('minage1', 3), bar1)
    E.out = pre + sg[0]
    P('@STAMP@')

    def rd2(k):
        ks, nt = k // 2, k % 2; sl = DN_SLOT[ks // 4]; f = vR2 + 4 * (k % NR2)
        o = sl % 65536 + (ks % 4) * 2048; bs = vDnr + 2 * (sl // 65536) + nt
        return [Item(f"ds_read_b64_tr_b16 {vr(f,2)}, v{bs} offset:{o}", lds_tag=('d', k), need_vm=(('dn', ks // 4),)),
                Item(f"ds_read_b64_tr_b16 {vr(f+2,2)}, v{bs} offset:{o + 1024}", lds_tag=('d', k))]
    E.wait_vm(('hh',))
    P("s_barrier")
    flag(3)
    P('@STAMP@')
    P(f"s_cmp_ge_u32 s{sC2}, 14\ns_cbranch_scc1 K_FIN")
    E.time = -100
    for k in range(8 * NE):
        for it in rd2(k): E.item(it)
    for j in range(NE, 5): dma_now(dn_dma(j))
    for k in range(8 * NE, 16):
        for it in rd2(k): E.item(it)
    sH0 = sPart; sH1 = sXo; sXl = sCnt; sOs = sThr
    P(f"""s_and_b32 s{sA}, s{sC2}, 1
s_lshl_b32 s{sA}, s{sA}, 1
s_lshl_b32 s{sB}, s{sR2}, 2
s_add_u32 s{sA}, s{sA}, s{sB}
s_mul_i32 s{sH0}, s{sA}, 114688
s_mul_i32 s{sB}, s{sW}, 28672
s_add_u32 s{sH0}, s{sH0}, s{sB}
s_add_u32 s{sH0}, s{sH0}, {WS_HH}
s_add_u32 s{sH1}, s{sH0}, 114688
s_lshr_b32 s{sB}, s{sW}, 1
s_add_u32 s{sA}, s{sA}, s{sB}
s_and_b32 s{sB}, s{sC2}, 14
s_and_b32 s{sD}, s{sW}, 1
s_add_u32 s{sB}, s{sB}, s{sD}
s_mul_i32 s{sXl}, s{sA}, 57344
s_lshl_b32 s{sD}, s{sB}, 12
s_add_u32 s{sXl}, s{sXl}, s{sD}
s_add_u32 s{sXl}, s{sXl}, {WS_X1}
s_mul_i32 s{sOs}, s{sA}, {32 * 896}
s_lshl_b32 s{sD}, s{sB}, 6
s_add_u32 s{sOs}, s{sOs}, s{sD}
s_lshl_b32 s{sD}, s{sB}, 7
s_add_u32 s{sD}, s{sD}, {WS_GB}""")
    for q in range(4): E.item(Item(f"buffer_load_dwordx4 {vr(vGB + 4 * q, 4)}, v{vGbo}, {sr(sWS,4)}, s{sD} offen" + (f" offset:{32 * q}" if q else "") + SC, vm_tag='gb'))
    E.wait_lds((('d', 15),))
    for j in range(5, 7): dma_now(dn_dma(j))
    wait_flags("POLL3", 3, sRow3)
    P('@STAMP@')
    for ks in range(28):
        if ks % 4 == 0 and ks: P(f"s_add_u32 s{sH0}, s{sH0}, 4096\ns_add_u32 s{sH1}, s{sH1}, 4096")
        for tt in range(2):
            E.item(Item(f"buffer_load_dwordx4 {ar(aHB + 8 * ks + 4 * tt, 4)}, v{vLn}, {sr(sWS,4)}, s{sH1 if tt else sH0} offen" + (f" offset:{1024 * (ks % 4)}" if ks % 4 else "") + SC, vm_tag=('hb', ks, tt)))
    for q in range(4): E.item(Item(f"buffer_load_dwordx4 {vr(vX1 + 4 * q, 4)}, v{vLn}, {sr(sWS,4)}, s{sXl} offen" + (f" offset:{1024 * q}" if q else "") + SC, vm_tag='x1l'))
    S = Sched(112, opt)
    for ks in range(28):
        for tt in range(2):
            for nt in range(2):
                n = 4 * ks + 2 * tt + nt; k = 2 * ks + nt
                acc = vr(vD + 16 * (2 * tt + nt), 16)
                S.mf[n] = f"{MF32} {acc}, {vr(vR2 + 4 * (k % NR2), 4)}, {ar(aHB + 8 * ks + 4 * tt, 4)}, {0 if ks == 0 else acc}"
                S.need[n] = (('d', k),); S.needvm[n] = (('hb', ks, tt),)
    for k in range(16, 56):
        g = 2 * (k - 16)
        assert k < NR2 or g > 4 * ((k - NR2) // 2) + 3
        S.fixed[g] += rd2(k)
    pre = E.out; E.out = []
    sg = S.emit(E, 10 ** 6, 3, None)
    E.out = pre + sg[0]
    P('@STAMP@')
    P(f"""v_add_u32 v{vRW}, s{sW8}, v{vLn}
v_add_u32 v{vRW}, 0x10000, v{vRW}
s_and_b32 s{sA}, s{sW}, 1
s_lshl_b32 s{sA}, s{sA}, 12
s_lshr_b32 s{sB}, s{sW}, 1
s_lshl_b32 s{sB}, s{sB}, 15
s_add_u32 s{sA}, s{sA}, s{sB}
s_add_u32 s{sA}, s{sA}, 0x10000
v_add_u32 v{vRR}, s{sA}, v{vLn}
s_nop 7""")
    for i in range(4):
        for q in range(4): P(f"ds_write_b128 v{vRW}, {vr(vD + 16 * i + 4 * q, 4)} offset:{(i & 1) * 4096 + (i >> 1) * 32768 + 1024 * q}")
    P("s_waitcnt lgkmcnt(0)\ns_barrier")
    for w in range(4):
        for q in range(4): P(f"ds_read_b128 {vr(vD + 16 * w + 4 * q, 4)}, v{vRR} offset:{w * 8192 + 1024 * q}")
    P("s_waitcnt vmcnt(0) lgkmcnt(8)")
    PL([f"v_add_f32 v{vD + k}, v{vD + k}, v{vD + 16 + k}" for k in range(16)])
    P("s_waitcnt lgkmcnt(0)")
    PL([f"v_add_f32 v{vD + 32 + k}, v{vD + 32 + k}, v{vD + 48 + k}" for k in range(16)])
    PL([f"v_add_f32 v{vD + k}, v{vD + k}, v{vD + 32 + k}" for k in range(16)])
    PL([f"v_fma_f32 v{vD + k}, v{vD + k}, v{vGB + k}, v{vX1 + k}" for k in range(16)])
    PL([f"v_cvt_pk_bf16_f32 v{vD + 16 + k}, v{vD + 2 * k}, v{vD + 2 * k + 1}" for k in range(8)])
    P("s_nop 1")
    for z in range(2):
        for e in range(2): P(f"v_permlane32_swap_b32 v{vD + 16 + 4 * z + e}, v{vD + 18 + 4 * z + e}")
    for z in range(2): P(f"buffer_store_dwordx4 {vr(vD + 16 + 4 * z, 4)}, v{vOo}, {sr(sOut,4)}, s{sOs} offen" + (" offset:32" if z else ""))
    out = E.out; E.out = []
    return out
```

```python
from asmlib import *
import math, re as _re

WS_MOD  = 0
WS_GA = 4096; WS_B0 = 4096 + 1792; WS_B1 = 4096 + 3584; WS_GB = 4096 + 5376
WS_FLAG = 16384
FRAGB   = 128 * 14 * 1024
WS_H2   = 1 << 20
WS_X1   = WS_H2 + (2 << 20)
WS_HH   = WS_X1 + (4 << 20)
WS_PART = WS_HH + (8 << 20)
WS_END  = WS_PART + 16 * FRAGB
WS_SIZE = 268435456
OOB = 0x40000000
DEF_PLAY = 1
PLAY = [(2048, FRAGB, 14336), (1 << 22, 1 << 18, 2048), (1 << 22, 2048, 32768)]

SLOT = [0, 65536, 32768, 98304]
LDS_MOD = 131072
LDS_SCR = 131072 + 8192
LDS_LN  = 131072 + 29184
LDS_TOT = 163840

vK = 1; vV = 5; vDK = 13; vDV = 21; vL = 29; vPS = 31; vTM = 33; vSTMP = 39; vT = 40; vNEG = 48; vGU = 56; vFst = 63; vQ = 64
vS = [128, 160]; vP = [192, 208]
vHB = 32; vMV = 64; vFT = 100; vDW = 108; vMod = 112; vX = 113; vWlo = 120; vXN = 128; vWhi = 240; vQT = 40
vOB = 64; vOA = [128, 160]; vST = [192, 208]; vWoA = 224; vDWo = 232; vL16 = 233; vRL = 236; vOT = 240
aO = 0; aQA = 0; aF = 128
sK = 4; sV = 8; sWq = 12; sWo = 16; sWS = 20; sW8 = 24; sKo = 25; sVo = 26; sCnt = 27; sThr = 28; sTmp = 29; sRet = 30; sPart = 32; sXo = 33
sGUl = 34; sT2 = 35
sX = 36; sDbg = 40; sGU = 44; sWm = 48; sC = 52; sW = 56; sHead = 57; sQb = 58; sA = 59; sB = 60; sD = 61; sE = 62; sF = 63
sDn = 12; sOut = 48
KA = 64
sRot = [92, 93, 94, 95, 100, 101, 35]

MF = "v_mfma_f32_16x16x32_bf16"
MF32 = "v_mfma_f32_32x32x16_bf16"
THR_LOG2 = 64
G = 64
POLLMAX = 1 << 14
def f2u(x):
    import struct
    return hex(struct.unpack('<I', struct.pack('<f', x))[0])

class Sched:
    def __init__(self, NG, opt):
        self.NG = NG
        self.mf = [None] * NG
        self.need = [()] * NG
        self.needvm = [()] * NG
        self.fixed = [[] for _ in range(NG + 1)]
        self.valu = [[] for _ in range(NG + 1)]
        self.post = [[] for _ in range(NG + 1)]
        self.free_nv = opt.get('free_nv', 0)
    def cost(self, g):
        c = sum((2 if isinstance(x, tuple) else x.cost) for x in self.fixed[g])
        c = max(0, c - self.free_nv)
        return c + sum(x.cost for x in self.valu[g]) + sum(x.cost for x in self.post[g])
    def spread(self, items, g0, g1):
        items = [Item(x) if isinstance(x, str) else x for x in items]
        tot = sum(x.cost for x in items)
        base = [self.cost(g) for g in range(g0, g1 + 1)]
        lo, hi = 0.0, 1000.0
        for _ in range(50):
            m = (lo + hi) / 2
            if sum(max(0, m - b) for b in base) >= tot: hi = m
            else: lo = m
        cum = 0.0; done = 0.0; k = 0
        for g in range(g0, g1 + 1):
            cum += max(0, hi - base[g - g0])
            while k < len(items) and (done + items[k].cost / 2 <= cum + 1e-6 or g == g1):
                self.valu[g].append(items[k]); done += items[k].cost; k += 1
        assert k == len(items)
    def stream(self, groups, cap):
        g = 0
        for e, items in groups:
            g = max(g, min(e, self.NG))
            for it in items:
                it = Item(it) if isinstance(it, str) else it
                while g < self.NG and self.cost(g) + it.cost > cap + (0.5 if it.cost > 1 else 0): g += 1
                self.valu[g].append(it)
    def place_reads(self, g0, reads, first_use, rd_last, dist):
        flat = [(it, first_use[f]) for f, r in enumerate(reads) for it in r]
        n = len(flat)
        pos = [min(g0 + (k * (rd_last + 1)) // n, flat[k][1] - dist) for k in range(n)]
        for k in range(n - 2, -1, -1):
            pos[k] = min(pos[k], pos[k + 1])
            if k + 2 < n and pos[k] == pos[k + 2]: pos[k] -= 1
        for k in range(n):
            self.fixed[max(pos[k], g0)].append(flat[k][0])
    def emit(self, E, G, minage, bar):
        segs = []
        for n in range(self.NG + 1):
            if n % G == 0 and n:
                segs.append(E.out); E.out = []
            E.time = n
            if n < self.NG and self.mf[n] is not None:
                E.wait_lds(self.need[n], minage)
                if self.needvm[n]: E.wait_vm(self.needvm[n])
                E.raw(self.mf[n])
            for it in self.fixed[n]:
                if isinstance(it, tuple):
                    bar(E, it)
                    if len(E.out) >= 2 and E.out[-1].startswith('s_waitcnt vm') and E.out[-2].startswith('s_waitcnt lgkm'):
                        a = E.out.pop(); b = E.out.pop(); E.raw(a + ' ' + b.split()[1])
                    E.raw("s_barrier")
                else:
                    if it.text.endswith('lds') and E.out and ' m0,' in E.out[-1]: E.raw('s_nop 0')
                    E.item(it)
            for it in self.valu[n] + self.post[n]: E.item(it, minage)
        segs.append(E.out); E.out = []
        return segs

def xlane_reduce(op, a, t):
    return [Item(f"v_mov_b32 v{t}, v{a}"), Item("s_nop 1", cost=2), Item(f"v_permlane32_swap_b32 v{a}, v{t}"), Item(f"{op} v{a}, v{a}, v{t}"),
            Item(f"v_mov_b32 v{t}, v{a}"), Item("s_nop 1", cost=2), Item(f"v_permlane16_swap_b32 v{a}, v{t}"), Item(f"{op} v{a}, v{a}, v{t}")]
def xlane_multi(op, regs, tmps):
    r = []
    for sw in ('32', '16'):
        r += [f"v_mov_b32 v{t}, v{a}" for a, t in zip(regs, tmps)] + ["s_nop 1"]
        r += [f"v_permlane{sw}_swap_b32 v{a}, v{t}" for a, t in zip(regs, tmps)]
        r += [f"{op} v{a}, v{a}, v{t}" for a, t in zip(regs, tmps)]
    return r
def srd(d, plo, off, size):
    if off is None: r = [f"s_mov_b32 s{d}, s{plo}", f"s_mov_b32 s{d+1}, s{plo+1}"]
    else: r = [f"s_add_u32 s{d}, s{plo}, {off}", f"s_addc_u32 s{d+1}, s{plo+1}, 0"]
    r.append(size if isinstance(size, str) else f"s_mov_b32 s{d+2}, {size}")
    r.append(f"s_mov_b32 s{d+3}, 0x20000")
    return "\n".join(r)

def gen(opt=None):
    opt = opt or {}
    SH = opt.get('shift', 12)
    RD_LAST = opt.get('rd_last', 55)
    MINAGE = opt.get('minage', 6)
    DIST = opt.get('dist', 10)
    NPRE = opt.get('npre', 4)
    SC = ' sc1'
    P_C, P_H, P_Q = PLAY[opt.get('play', DEF_PLAY)]
    NPH = 78
    NG = NPH * G + SH
    S_ = Sched(NG, opt)
    mf = S_.mf; fixed = S_.fixed; valu = S_.valu; post = S_.post; spread = S_.spread
    stamps = opt.get('stamps')
    nst = [0]; streg = [255]
    def stamp_lines():
        if stamps is None: return []
        k = nst[0]; nst[0] += 1
        return ["s_memtime s[96:97]", "s_memrealtime s[98:99]", "s_waitcnt lgkmcnt(0)", f"v_writelane_b32 v{streg[0]}, s96, {2 * k}", f"v_writelane_b32 v{streg[0]}, s98, {2 * k + 1}"]

    def phase_kind(j):
        if j < 7: return ('W', j)
        if j == 7: return ('K', 0)
        if j <= 69: return ('K', (j - 6) // 2) if j % 2 == 0 else ('V', (j - 9) // 2)
        if j == 70: return ('V', 31)
        return ('O', j - 71)
    def slot_of(j):
        if j <= 69: return j % 4
        return {70: 3, 71: 2, 72: 0, 73: 1, 74: 3, 75: 2, 76: 0, 77: 1}[j]
    def dma_seg(j):
        if j < 4: return None
        if j <= 69: return j - 3
        return {70: 68, 71: 67, 72: 69, 73: 70, 74: 71, 75: 72, 76: 73, 77: 74}[j]
    N0 = lambda j: G * j + SH
    dmod = opt.get('dma_mod', '')

    def dma_items(j):
        kind, t = phase_kind(j); sl = SLOT[slot_of(j)]
        its = []
        for q in range(8):
            pre = []
            if q % 4 == 0: pre.append(f"s_add_u32 m0, s{sW8}, {sl + (q // 4) * 4096}")
            imm = (q % 4) * 1024
            off = f" offset:{imm}" if imm else ""
            if kind == 'K':
                ld = f"buffer_load_dwordx4 v{vDK + q}, {sr(sK,4)}, s{sKo} offen{off}{dmod} lds"
            elif kind == 'V':
                ld = f"buffer_load_dwordx4 v{vDV + q}, {sr(sV,4)}, s{sVo} offen{off}{dmod} lds"
            elif kind == 'W':
                pre.append(f"s_add_u32 s{sTmp}, s{sRot[t]}, {2 * q * 8192 - imm}" if q else f"s_mov_b32 s{sTmp}, s{sRot[t]}")
                ld = f"buffer_load_dwordx4 v{vDW + (q & 1) + 2 * (q >> 2)}, {sr(sWq,4)}, s{sTmp} offen{off} lds"
            else:
                pre.append(f"s_mov_b32 s{sTmp}, {8 * q * 896 + (0 if opt.get('wo_same') else 128 * t) - imm}")
                ld = f"buffer_load_dwordx4 v{vDWo}, {sr(sWo,4)}, s{sTmp} offen{off} lds"
            aft = []
            if q == 7 and kind == 'K': aft.append(f"s_add_u32 s{sKo}, s{sKo}, 32768")
            if q == 7 and kind == 'V': aft.append(f"s_add_u32 s{sVo}, s{sVo}, 32768")
            its.append((pre, Item(ld, vm_tag=('tile', j), cost=opt.get('dma_cost', 1)), aft))
        return its
    GU_SLOT = [131072, 98304, 32768, 0, 65536, 131072, 98304]
    def gu_dma(c):
        its = []
        for q in range(7):
            pre = []
            if q == 0: pre.append(f"s_mov_b32 s{sTmp}, {(0 if opt.get('gu_same') else c) * 64 * 3584}")
            if q % 4 == 0: pre.append(f"s_add_u32 m0, s{sGUl}, {GU_SLOT[c] + (q // 4) * 4096}")
            imm = (q % 4) * 1024
            off = f" offset:{imm}" if imm else ""
            its.append((pre, Item(f"buffer_load_dwordx4 v{vGU + q}, {sr(sGU,4)}, s{sTmp} offen{off} lds", vm_tag=('gu', c)), []))
        return its

    Qr = lambda s, qh: vQ + 8 * s + 4 * qh
    Sr = lambda b, kb, qh: vS[b] + (2 * kb + qh) * 4
    Pr = lambda b, qh, ks: vP[b] + 8 * qh + 4 * ks
    last_write = {}
    first_read = {}
    for j in range(NPH):
        kind, t = phase_kind(j); sl = SLOT[slot_of(j)]
        if kind in 'WV': order = [((dt, ks), qh) for dt in range(16) for qh in range(2) for ks in range(2)]
        elif kind == 'K': order = [((kb, s), qh) for kb in range(4) for qh in range(2) for s in range(8)]
        else:
            if t == 0: order = [((nt, ks), qh) for ks in range(8) for nt in range(4) for qh in range(2)]
            else: order = [((nt, ks), qh) for nt in range(4) for qh in range(2) for ks in range(8)]
        fidx = {}; reads = []; first = []
        started = set()
        for p, (key, qh) in enumerate(order):
            n = N0(j) + p
            if key not in fidx:
                fi = len(fidx); fidx[key] = fi; f = aF + 4 * fi; tag = ('f', j, fi)
                if kind in 'WV':
                    dt, ks = key
                    base = (vV if kind == 'V' else vWlo if sl < 65536 else vWhi) + (dt & 7)
                    assert kind == 'W' or sl >= 65536
                    o = (sl % 65536) + 32 * ks * 512 + (dt >> 3) * 256
                    rd = [f"ds_read_b64_tr_b16 {ar(f,2)}, v{base} offset:{o}", f"ds_read_b64_tr_b16 {ar(f+2,2)}, v{base} offset:{o + (16 if kind == 'V' else 4) * 512}"]
                elif kind == 'K':
                    kb, s = key
                    o = (0 if t == 0 else sl) + kb * 8192 + (s >> 2) * 256
                    rd = [f"ds_read_b128 {ar(f,4)}, v{vK + (s & 3)} offset:{o}"]
                else:
                    nt, ks = key
                    base = vWoA + nt + (4 if sl >= 65536 else 0)
                    o = (sl % 65536) + 32 * ks * 128
                    rd = [f"ds_read_b64_tr_b16 {ar(f,2)}, v{base} offset:{o}", f"ds_read_b64_tr_b16 {ar(f+2,2)}, v{base} offset:{o + 16 * 128}"]
                reads.append([Item(x, lds_tag=tag) for x in rd]); first.append(n)
            fi = fidx[key]; f = aF + 4 * fi
            accname = (key[0], qh)
            isfirst = accname not in started; started.add(accname)
            if kind == 'W':
                dt, ks = key
                acc = ar(aQA + 8 * dt + 4 * qh, 4)
                mf[n] = f"{MF} {acc}, {ar(f,4)}, {vr(vHB + 16 * (t % 2) + 8 * qh + 4 * ks, 4)}, {0 if (t == 0 and isfirst) else acc}"
            elif kind == 'K':
                kb, s = key
                acc = vr(Sr(t % 2, kb, qh), 4)
                c = acc if not isfirst else (0 if t < 2 else vr(vNEG + 4 * qh, 4))
                mf[n] = f"{MF} {acc}, {ar(f,4)}, {vr(Qr(s, qh), 4)}, {c}"
                first_read.setdefault((j, s, qh), n)
            elif kind == 'V':
                dt, ks = key
                acc = ar(aO + 8 * dt + 4 * qh, 4)
                mf[n] = f"{MF} {acc}, {ar(f,4)}, {vr(Pr(t % 2, qh, ks), 4)}, {0 if (t == 0 and isfirst) else acc}"
            else:
                nt, ks = key
                acc = vr(vOA[t % 2] + 8 * nt + 4 * qh, 4)
                mf[n] = f"{MF} {acc}, {ar(f,4)}, {vr(vOB + 8 * ks + 4 * qh, 4)}, {0 if isfirst else acc}"
                first_read.setdefault((j, ks, qh), n)
            last_write[(j,) + accname] = n
            S_.need[n] = (('f', j, fi),)
        fixed[G * j].append(('BAR', j))
        S_.place_reads(G * j, reads, first, RD_LAST, DIST)
    DMA0 = opt.get('dma0', 5); DMAST = opt.get('dma_step', 7)
    def put_dma(S, its, g0, step):
        for q, (pre, it, aft) in enumerate(its):
            g = g0 + q * step
            for k, x in enumerate(pre): S.fixed[g - len(pre) + k].append(Item(x))
            S.fixed[g].append(it)
            for x in aft: S.fixed[g + 1].append(Item(x))
    for j in range(4, NPH): put_dma(S_, dma_items(j), G * dma_seg(j) + DMA0, DMAST)
    put_dma(S_, gu_dma(0) + gu_dma(1), G * 75 + 4, 4)
    put_dma(S_, gu_dma(2), G * 76 + DMA0, DMAST)
    put_dma(S_, gu_dma(3), G * 77 + DMA0, 5)

    HZ = 4
    def mod_reads(c):
        return [Item(f"ds_read_b128 {vr(vMV + 16 * ks + 4 * q, 4)}, v{vMod} offset:{(2 * c + ks) * 128 + 16 * (q & 1) + (3584 if q < 2 else 0)}", lds_tag=('m', c, ks)) for ks in range(2) for q in range(4)]
    def h_items(c):
        its = []
        for ks in range(2):
            mv = vMV + 16 * ks
            for qh in range(2):
                hb = vHB + 16 * (c % 2) + 8 * qh + 4 * ks
                xr = vXN + 4 * (qh * 14 + 2 * c + ks)
                for e in range(8):
                    its.append(Item(f"v_fma_mix_f32 v{vFT + e}, v{xr + e // 2}, v{mv + e}, v{mv + 8 + e} op_sel:[{e % 2},0,0] op_sel_hi:[1,0,0]", need_lds=((('m', c, ks),) if e == 0 else ())))
                its += [Item(f"v_cvt_pk_bf16_f32 v{hb + q}, v{vFT + 2 * q}, v{vFT + 2 * q + 1}") for q in range(4)]
        return its
    fixed[0][1:1] = mod_reads(0)
    spread(h_items(0), 1, SH - 2)
    for c in range(1, 7):
        for q, it in enumerate(mod_reads(c)): fixed[N0(c - 1) + q].append(it)
        spread(h_items(c), N0(c - 1) + 9, N0(c) - 3)
    for s in range(8):
        for qh in range(2):
            q = Qr(s, qh); a0 = aQA + 8 * (2 * s) + 4 * qh; tb = 48 + 8 * qh
            its = [f"v_accvgpr_read_b32 v{tb + 4 * u + e}, a{a0 + 8 * u + e}" for u in range(2) for e in range(4)]
            its += [f"v_cvt_pk_bf16_f32 v{q}, v{tb}, v{tb + 1}", f"v_cvt_pk_bf16_f32 v{q + 2}, v{tb + 4}, v{tb + 5}",
                   f"v_cvt_pk_bf16_f32 v{q + 1}, v{tb + 2}, v{tb + 3}", f"v_cvt_pk_bf16_f32 v{q + 3}, v{tb + 6}, v{tb + 7}", "s_nop 0",
                   f"v_permlane32_swap_b32 v{q}, v{q + 2}", f"v_permlane32_swap_b32 v{q + 1}, v{q + 3}", "s_nop 0",
                   f"v_permlane16_swap_b32 v{q}, v{q + 2}", f"v_permlane16_swap_b32 v{q + 1}, v{q + 3}"]
            lo = last_write[(6, 2 * s + 1, 1)] + HZ + 4 * qh
            hi = min(lo + 3, first_read[(7, s, qh)] - 3)
            assert hi >= lo, (s, qh, lo, hi)
            spread(its, lo, hi)
    spread([f"v_subrev_u32 v{vK + q}, {SLOT[3]}, v{vK + q}" for q in range(4)], G * 7 + RD_LAST + 1, G * 8 - 1)

    def sm_items(b, sub=False):
        pairs = [(kb, qh, h) for kb in range(4) for qh in range(2) for h in range(2)]
        def ex(k):
            kb, qh, h = pairs[k]; s = Sr(b, kb, qh) + 2 * h
            r = []
            if sub: r += [Item(f"v_add_f32 v{s + e}, v{vNEG + 4 * qh}, v{s + e}") for e in range(2)]
            r += [Item(f"v_exp_f32 v{vT + 2 * (k % 4) + e}, v{s + e}", cost=2) for e in range(2)]
            return r
        def fin(k):
            kb, qh, h = pairs[k]; a = vT + 2 * (k % 4); ps = vPS + qh
            cv = Item(f"v_cvt_pk_bf16_f32 v{Pr(b, qh, kb // 2) + 2 * (kb % 2) + h}, v{a}, v{a + 1}")
            if kb == 0 and h == 0: return [Item(f"v_add_f32 v{ps}, v{a}, v{a + 1}"), cv]
            return [Item(f"v_add_f32 v{ps}, v{a}, v{ps}"), cv, Item(f"v_add_f32 v{ps}, v{a + 1}, v{ps}")]
        seq = ex(0)
        for k in range(1, 16):
            e = ex(k); f = fin(k - 1)
            seq += e[:-1] + f[:1] + e[-1:] + f[1:]
        seq += fin(15)
        return seq
    def max_items(b, kbs, dst, init):
        its = []
        for qh in range(2):
            regs = [Sr(b, kb, qh) + r for kb in kbs for r in range(4)]
            d = dst + qh
            if init:
                its.append(Item(f"v_max3_f32 v{d}, v{regs[0]}, v{regs[1]}, v{regs[2]}")); regs = regs[3:]
            while len(regs) >= 2:
                its.append(Item(f"v_max3_f32 v{d}, v{d}, v{regs[0]}, v{regs[1]}")); regs = regs[2:]
            if regs: its.append(Item(f"v_max_f32 v{d}, v{d}, v{regs[0]}"))
        return its
    jK = lambda t: 7 if t == 0 else 2 * t + 6
    jV = lambda t: 70 if t == 31 else 2 * t + 9

    o0 = vOT
    ep_addr = [
        f"v_and_b32 v{o0}, 63, v0",
        f"v_lshlrev_b32 v{vL16}, 4, v{o0}",
        f"v_add_u32 v{vL16+1}, {P_Q}, v{vL16}",
        f"v_lshrrev_b32 v{o0+1}, 3, v{o0}",
        f"v_lshrrev_b32 v{o0+2}, 6, v0",
        f"v_lshl_add_u32 v{o0+1}, v{o0+2}, 6, v{o0+1}",
        f"v_mul_u32_u24 v{o0+1}, 896, v{o0+1}",
        f"v_lshrrev_b32 v{o0+2}, 3, v{o0}",
        f"v_and_b32 v{o0+2}, 6, v{o0+2}",
        f"v_and_b32 v{o0+3}, 7, v{o0}",
        f"v_xor_b32 v{o0+2}, v{o0+2}, v{o0+3}",
        f"v_lshl_add_u32 v{vDWo}, v{o0+2}, 4, v{o0+1}",
        f"v_lshrrev_b32 v{o0+1}, 2, v{o0}",
        f"v_lshlrev_b32 v{o0+1}, 7, v{o0+1}",
        f"v_bfe_u32 v{o0+2}, v{o0}, 3, 2",
        f"v_lshl_add_u32 v{o0+1}, v{o0+2}, 5, v{o0+1}",
        f"v_and_b32 v{o0+2}, 3, v{o0}",
        f"v_lshl_add_u32 v{vWoA}, v{o0+2}, 3, v{o0+1}",
    ] + [f"v_xor_b32 v{vWoA+q}, {32 * q}, v{vWoA}" for q in range(1, 4)] + [f"v_add_u32 v{vWoA+4+q}, 0x10000, v{vWoA+q}" for q in range(4)]
    for q in range(7):
        ep_addr += [f"v_add_u32 v{o0+1}, {64 * q}, v{o0}", f"v_mul_u32_u24 v{o0+1}, 4682, v{o0+1}", f"v_lshrrev_b32 v{o0+1}, 16, v{o0+1}",
                    f"v_mul_u32_u24 v{o0+1}, 3360, v{o0+1}", f"v_add3_u32 v{vGU+q}, v{o0+1}, v{vL16}, {'s%d' % sE if q >= 4 else 0}"]
    ep_addr.insert(0, f"s_mov_b32 s{sE}, 4096")
    ep_addr += [f"v_mov_b32 v{o0+1}, {OOB}", "v_cmp_eq_u32 vcc, 0, v0", f"v_mov_b32 v{o0+2}, 0", f"v_mov_b32 v{o0+3}, 1",
                f"v_cndmask_b32 v{vFst}, v{o0+1}, v{o0+2}, vcc"]
    spread(ep_addr, N0(7) + 16, N0(7) + 50)
    fixed[N0(8) + 2].append(Item(f"buffer_store_dword v{o0+2}, v{vFst}, {sr(sWS,4)}, s{sF} offen{SC}", vm_tag='fz'))
    fixed[G * 11 + 2].append(Item(f"s_and_b32 s{sE}, s2, 15\ns_lshl_b32 s{sE}, s{sE}, 2", cost=2))
    fixed[G * 11 + 3].append(Item(f"buffer_atomic_add v{o0+3}, v{vFst}, {sr(sDbg,4)}, s{sE} offen offset:128{SC}", need_vm=('fz',)))
    chk = [f"v_min_u32 v{o0}, 16, v0", f"v_mov_b32 v{o0+1}, 56", f"v_cmp_gt_u32 vcc, 16, v0", f"v_lshlrev_b32 v{o0}, 2, v{o0}", f"v_mov_b32 v{o0+2}, {OOB}",
           f"v_cndmask_b32 v{o0+1}, v{o0+1}, 16, vcc", "v_cmp_gt_u32 vcc, 64, v0", "s_nop 1",
           f"v_cndmask_b32 v{o0}, v{o0+2}, v{o0}, vcc", f"v_cndmask_b32 v{o0+1}, 0, v{o0+1}, vcc"]
    CH0 = N0(65) + 4
    for k, x in enumerate(chk): fixed[CH0 + k].append(Item(x))
    CHKLD = f"buffer_load_dword v{o0+2}, v{o0}, {sr(sDbg,4)}, 0 offen offset:128{SC}"
    fixed[CH0 + len(chk) + 1].append(Item(CHKLD, vm_tag='chk'))
    fixed[N0(69) + 4].append(Item(f"v_cmp_ne_u32 vcc, v{o0+1}, v{o0+2}", need_vm=('chk',)))
    fixed[N0(69) + 6].append(Item("s_cbranch_vccnz CHK_SLOW\nCHK_BACK:"))

    MAP = opt.get('map', 2)
    NTE = opt.get('nte', 3)
    if NTE:
        vTa = 244; vTd = 247; u = 248; NID = 128 >> MAP; T0 = 13 - NTE
        LW = -(-1792 // (NTE * NID)); RW = -(-448 // (NTE * NID // 2)); LD = -(-12544 // (NTE * 1024))
        BLK = [NID * LW * 128, RW * (NID // 2) * 3584, 1024 * LD * 128]
        def oob(d, n): return [f"v_sub_u32 v{u+1}, {n - 1}, v{u}", f"v_and_b32 v{u+1}, {OOB}, v{u+1}", f"v_add_u32 v{d}, v{d}, v{u+1}"]
        ta = [f"v_and_b32 v{u}, 63, v0",
              f"s_and_b32 s{sA}, s{sQb}, {(32 >> MAP) - 1}", f"s_lshl2_add_u32 s{sB}, s{sA}, s{sW}", f"s_mul_i32 s{sB}, s{sB}, {LW * 128}", f"s_sub_u32 s{sB}, s{sB}, {T0 * BLK[0]}",
              f"v_lshl_add_u32 v{vTa}, v{u}, 7, s{sB}"] + oob(vTa, LW)
        ta += [f"s_and_b32 s{sB}, s{sW}, 1", f"s_lshl1_add_u32 s{sB}, s{sA}, s{sB}", f"s_mul_i32 s{sB}, s{sB}, {RW * 3584}", f"s_sub_u32 s{sB}, s{sB}, {T0 * BLK[1]}",
               f"v_lshrrev_b32 v{u+1}, 2, v{u}", f"v_mul_u32_u24 v{u+1}, 3584, v{u+1}", f"v_and_b32 v{u+2}, 3, v{u}", f"v_mul_u32_u24 v{u+2}, 72, v{u+2}",
               f"v_add3_u32 v{vTa+1}, v{u+1}, v{u+2}, s{sB}"] + oob(vTa + 1, 4 * RW)
        ta += [f"s_lshl2_add_u32 s{sB}, s2, s{sW}", f"s_mul_i32 s{sB}, s{sB}, {LD * 128}", f"s_sub_u32 s{sB}, s{sB}, {T0 * BLK[2]}",
               f"v_lshl_add_u32 v{vTa+2}, v{u}, 7, s{sB}"] + oob(vTa + 2, LD)
        ta += [f"s_mul_i32 s{sA}, s{sHead}, 224", f"s_cmp_lt_u32 s{sW}, 2\ns_cselect_b32 s{sWm}, s{KA+12}, s{KA+14}\ns_cselect_b32 s{sWm+1}, s{KA+13}, s{KA+15}",
               f"s_add_u32 s{sWm}, s{sWm}, s{sA}\ns_addc_u32 s{sWm+1}, s{sWm+1}, 0", f"s_sub_u32 s{sWm+2}, {448 * 3584}, s{sA}",
               f"s_mov_b32 s{sC}, s{KA+16}", f"s_mov_b32 s{sC+1}, s{KA+17}", f"s_mov_b32 s{sC+2}, {1792 * 896}"]
        for k, x in enumerate(ta): fixed[N0(9) + 12 + k].append(Item(x))
        for sg in range(12, 64, 4):
            for k, r in enumerate((sWo, sWm, sC)):
                if str(k) not in opt.get('tsel', '012'): continue
                fixed[G * sg + (2, 30, 66)[k]].append(Item(f"buffer_load_dword v{vTd}, v{vTa + k}, {sr(r,4)}, 0 offen", vm_tag='tch', cost=0))
                fixed[G * sg + (3, 31, 67)[k]].append(Item(f"v_add_u32 v{vTa + k}, {BLK[k]}, v{vTa + k}", cost=0))

    vCT = 252; NCL = 5
    KVD = opt.get('kvd', 0)
    if KVD:
        vKp = 251; u = 248; NW = 128 >> MAP; LK = 512 // NW
        ta = [f"v_and_b32 v{u}, 63, v0", f"s_and_b32 s{sA}, s{sQb}, {(32 >> MAP) - 1}", f"s_lshl2_add_u32 s{sB}, s{sA}, s{sW}", f"s_mul_i32 s{sB}, s{sB}, {LK * 128}",
              f"s_add_u32 s{sB}, s{sB}, {4 * 32768 + KVD * 65536}", f"v_lshl_add_u32 v{vKp}, v{u}, 7, s{sB}",
              f"v_sub_u32 v{u+1}, {LK - 1}, v{u}", f"v_and_b32 v{u+1}, {OOB}, v{u+1}", f"v_add_u32 v{vKp}, v{vKp}, v{u+1}"]
        for k, x in enumerate(ta): fixed[N0(10) + 12 + k].append(Item(x))
        for sg in range(12, 64, 4):
            fixed[G * sg + 16].append(Item(f"buffer_load_dword v{vCT+2}, v{vKp}, {sr(sK,4)}, 0 offen", vm_tag='tch', cost=0))
            fixed[G * sg + 51].append(Item(f"buffer_load_dword v{vCT+2}, v{vKp}, {sr(sV,4)}, 0 offen", vm_tag='tch', cost=0))
            fixed[G * sg + 52].append(Item(f"v_add_u32 v{vKp}, 65536, v{vKp}", cost=0))
    if opt.get('ct', 1) >= 2:
        for sg in range(12, 64, 4): fixed[G * sg + 44].append(Item(f"global_load_dword v{vCT+2}, v[{vCT}:{vCT+1}], off", vm_tag='tch', cost=0))
    for t in range(32):
        sdone = N0(jK(t)) + G - 1
        pv0 = N0(jV(t))
        if t == 0:
            spread(max_items(0, [0, 1, 2], vTM, True), N0(7) + 47 + HZ, sdone + 1)
            its = max_items(0, [3], vTM, False)
            for qh in range(2):
                its += xlane_reduce("v_max_f32", vTM + qh, vTM + 2)
                its.append(Item(f"v_sub_f32 v{vNEG + 4 * qh}, 0, v{vTM + qh}"))
            its += sm_items(0, sub=True)
            its += [Item(f"v_mov_b32 v{vL + qh}, v{vPS + qh}") for qh in range(2)]
            spread(its, sdone + HZ, pv0 - 2)
            spread([f"v_mov_b32 v{vNEG + 4 * qh + q}, v{vNEG + 4 * qh}" for qh in range(2) for q in range(1, 4)], pv0, pv0 + 10)
            continue
        its = sm_items(t % 2, sub=(t == 1))
        its.append(Item(f"v_max_f32 v{vTM}, v{vPS}, v{vPS + 1}"))
        its.append(Item(f"v_cmp_nge_f32 vcc, s{sThr}, v{vTM}"))
        spread(its, sdone + 2, pv0 - 3)
        post[pv0 - 1].append(Item(f"s_cbranch_vccnz @RARE{t % 2}@\n@BACK@:"))
        valu[pv0] += [Item(f"v_add_f32 v{vL + qh}, v{vL + qh}, v{vPS + qh}") for qh in range(2)]

    pv = N0(70)
    its = []
    for qh in range(2):
        its += xlane_reduce("v_add_f32", vL + qh, vTM) + [Item(f"v_rcp_f32 v{vRL + qh}, v{vL + qh}", cost=2)]
    spread(its, pv + 1, pv + 10)
    for ks in range(8):
        for qh in range(2):
            tb = vOT + 8 * qh
            its = [f"v_accvgpr_read_b32 v{tb + 4 * u + e}, a{aO + 8 * (2 * ks + u) + 4 * qh + e}" for u in range(2) for e in range(4)]
            its += [f"v_cvt_pk_bf16_f32 v{vOB + 8 * ks + 4 * qh + q}, v{tb + 2 * q}, v{tb + 2 * q + 1}" for q in range(4)]
            lo = pv + 12 + (2 * ks + qh) * 6; hi = lo + 5
            assert lo >= last_write[(70, 2 * ks + 1, 1)] + HZ and hi <= first_read[(71, ks, 0)] - 2, (ks, lo, hi)
            spread(its, lo, hi)
    for c in range(7):
        A = vOA[c % 2]; ST = vST[c % 2]
        k = 0
        for a in range(2):
            for qh in range(2):
                its = []
                if a == 0 and qh == 0: its.append(Item(f"s_add_u32 s{sXo}, s{sPart}, {c * P_C}"))
                src = [A + 8 * (2 * a + u) + 4 * qh + e for u in range(2) for e in range(4)]
                st = ST + 8 * a + 4 * qh
                its += [Item(f"v_mul_f32 v{x}, v{vRL + qh}, v{x}") for x in src]
                its += [Item(f"v_cvt_pk_bf16_f32 v{st + q}, v{src[2 * q]}, v{src[2 * q + 1]}") for q in range(4)]
                its.append(Item(f"buffer_store_dwordx4 {vr(st, 4)}, v{vL16 + qh}, {sr(sWS,4)}, s{sXo} offen" + (" offset:1024" if a else "") + opt.get('st_mod', SC), vm_tag=('st', c)))
                lw = last_write[(71 + c, 2 * a + 1, qh)]
                if c == 0: lo = N0(72) + HZ + 8 * k; hi = lo + 7
                else: lo = last_write[(71 + c, 2 * a + 1, 0)] + HZ + 14 * qh + (10 if c == 1 and a == 0 else 0); hi = lo + 13 - (5 if c == 1 and a == 0 else 0)
                assert lo >= lw + HZ
                if hi >= NG:
                    valu[NG].append(Item("s_nop 7")); valu[NG] += its
                else:
                    spread(its, lo, hi)
                k += 1

    E = Emitter()
    P = E.raw
    def PL(l):
        for x in l: E.raw(x)
    def poll(name, load, cmp_, dst):
        P(f"""s_mov_b32 s{sE}, {POLLMAX}
{name}_L:
{load}
s_waitcnt vmcnt(0)
{cmp_}
s_sub_u32 s{sE}, s{sE}, 1
s_cbranch_scc1 {name}_D
s_cmp_eq_u64 vcc, -1
s_cbranch_scc1 {name}_D
s_sleep 1
s_branch {name}_L
{name}_D:""")
    P("s_cmp_ge_u32 s2, 256\ns_cbranch_scc1 K_END")
    PL(stamp_lines())
    W = vL; L = vL + 1; t0 = vFT; t1 = t0 + 1; t2 = t0 + 2; t3 = t0 + 3; t4 = t0 + 4
    pW = 64; pC = 92; pA = 40; pH = 48; pT = 56
    NA = opt.get('na', 4)
    code_touch = f"""s_getpc_b64 s[{sWS}:{sWS+1}]
K_PC:
s_lshr_b32 s{sA}, s2, 3
v_min_u32 v{vCT}, {NCL - 1}, v{L}
s_lshl2_add_u32 s{sA}, s{sA}, s{sW}
v_lshlrev_b32 v{vCT}, 14, v{vCT}
v_lshl_add_u32 v{vCT}, s{sA}, 7, v{vCT}
v_min_u32 v{vCT}, K_END-K_PC, v{vCT}
v_mov_b32 v{vCT+1}, s{sWS+1}
v_add_co_u32 v{vCT}, vcc, s{sWS}, v{vCT}
s_nop 1
v_addc_co_u32 v{vCT+1}, vcc, 0, v{vCT+1}, vcc
global_load_dword v{vCT+2}, v[{vCT}:{vCT+1}], off
""" if opt.get('ct', 1) else ""
    P(f"""s_load_dwordx8 s[{KA+16}:{KA+23}], s[0:1], 64
s_load_dwordx16 s[{KA}:{KA+15}], s[0:1], 0
s_load_dwordx4 s[{KA+24}:{KA+27}], s[0:1], 96
v_lshrrev_b32 v{W}, 6, v0
v_and_b32 v{L}, 63, v0
v_readfirstlane_b32 s{sW}, v{W}
@CODE@s_bfe_u32 s{sHead}, s2, {(MAP - 1) | ((4 - MAP) << 16)}
s_bfe_u32 s{sA}, s2, {3 | (MAP << 16)}
s_lshl_b32 s{sHead}, s{sHead}, {MAP}
s_lshr_b32 s{sQb}, s2, {3 + MAP}
s_add_u32 s{sHead}, s{sHead}, s{sA}
s_and_b32 s{sA}, s2, {(1 << (MAP - 1)) - 1}
s_lshl_b32 s{sA}, s{sA}, {5 - MAP}
s_add_u32 s{sQb}, s{sQb}, s{sA}
s_lshl2_add_u32 s{sB}, s{sHead}, s{sQb}
s_mul_i32 s{sA}, s{sB}, 37
s_lshr_b32 s{sA}, s{sA}, 8
s_mul_i32 s{sA}, s{sA}, 7
s_sub_u32 s{sB}, s{sB}, s{sA}
s_mul_i32 s{sRot[0]}, s{sB}, {128 * opt.get('rot', 1)}
v_lshrrev_b32 v{t0}, 2, v0
v_and_b32 v{t1}, 3, v0
v_mul_u32_u24 v{t2}, 5376, v{t0}
v_lshl_add_u32 v{t2}, v{t1}, 4, v{t2}
v_lshlrev_b32 v{t3}, 1, v{t0}
v_lshrrev_b32 v{t0}, 2, v{L}
v_mul_u32_u24 v{vX}, 896, v{t0}
v_lshrrev_b32 v{t0}, 4, v{L}
v_sub_u32 v{t0}, 0, v{t0}
v_xor_b32 v{t0}, v{t0}, v{L}
v_and_b32 v{t0}, 3, v{t0}
v_lshl_add_u32 v{vX}, v{t0}, 4, v{vX}
v_add_u32 v{vX+4}, {16 * 896}, v{vX}
v_lshrrev_b32 v{t0}, 5, v{L}
v_and_b32 v{t1}, 31, v{L}
s_lshl_b32 s{sW8}, s{sW}, 13
s_lshl2_add_u32 s{sA}, s{sQb}, s{sW}
s_mul_i32 s{sXo}, s{sA}, {32 * 896}""".replace('@CODE@', code_touch))
    for c in range(1, 7): P(f"s_add_u32 s{sRot[c]}, s{sRot[c-1]}, 128\ns_cmp_eq_u32 s{sRot[c]}, 896\ns_cselect_b32 s{sRot[c]}, 0, s{sRot[c]}")
    P(f"""s_lshl_b32 s{sD}, s2, 6
s_cmp_ge_u32 s2, 84
s_waitcnt lgkmcnt(0)
{srd(sWm, KA + 20, None, 448 * 5376)}
{srd(sC, KA + 18, None, 896)}
{srd(sX, KA + 0, None, 2048 * 896)}
s_cbranch_scc1 PRO_A""")
    for i in range(7): P(f"buffer_load_ushort v{pC + i}, v{t3}, {sr(sC,4)}, 0 offen" + (f" offset:{128 * i}" if i else ""))
    for i in range(7):
        P(f"buffer_load_dwordx4 {vr(pW + 4 * i, 4)}, v{t2}, {sr(sWm,4)}, s{sD} offen")
        if i < 6: P(f"s_add_u32 s{sD}, s{sD}, {64 * 5376}")
    P("PRO_A:")
    XB = [65536, 32768, 98304, 131072 + 4096]
    xl = lambda s, qh: XB[(2 * s + qh) // 8] + ((2 * s + qh) % 8) * 1024
    def x_dma(s):
        for qh in range(2):
            P(f"s_add_u32 m0, s{sW8}, {xl(s, qh) - 64 * (s & 1)}")
            P(f"s_add_u32 s{sTmp}, s{sXo}, s{sRot[s // 2]}" if (s & 1) == 0 and qh == 0 else "s_nop 0")
            E.item(Item(f"buffer_load_dwordx4 v{vX + 4 * qh}, {sr(sX,4)}, s{sTmp} offen" + (" offset:64" if s & 1 else "") + " lds", vm_tag=('x', s)))
    assert NA % 2 == 0
    for s in range(NA): x_dma(s)
    P(f"""{srd(sWS, KA + 26, opt.get('wsoff'), WS_SIZE - opt.get('wsoff', 0))}
{srd(sDbg, KA + 24, None, 256)}""")
    if opt.get('pst'): PL(stamp_lines())
    P("s_cmp_ge_u32 s2, 84\ns_cbranch_scc1 PRO_B")
    P(f"s_mov_b32 s{sD}, {f2u(-math.log2(math.e))}")
    PL([f"v_mov_b32 v{pA + e}, 0" for e in range(8)])
    P(f"""v_lshrrev_b32 v{t2}, 4, v0
v_and_b32 v{t3}, 3, v0
v_lshlrev_b32 v{t2}, 7, v{t2}
v_lshl_add_u32 v{t2}, v{t3}, 5, v{t2}
v_add_u32 v{t2}, {LDS_SCR}, v{t2}
v_lshlrev_b32 v{t3}, 10, v{t0}
v_lshl_add_u32 v{t3}, v{t1}, 2, v{t3}
v_add_u32 v{t3}, {LDS_SCR}, v{t3}
s_waitcnt vmcnt({7 + 2 * NA})""")
    PL([f"v_lshlrev_b32 v{pC + i}, 16, v{pC + i}" for i in range(7)])
    PL([f"v_mul_f32 v{pT + i}, s{sD}, v{pC + i}" for i in range(7)])
    PL([f"v_exp_f32 v{pT + i}, v{pT + i}" for i in range(7)])
    PL([f"v_add_f32 v{pT + i}, 1.0, v{pT + i}" for i in range(7)])
    PL([f"v_rcp_f32 v{pT + i}, v{pT + i}" for i in range(7)])
    PL([f"v_mul_f32 v{pC + i}, v{pC + i}, v{pT + i}" for i in range(7)])
    PL([f"v_cvt_pk_bf16_f32 v{pC + i}, v{pC + i}, 0" for i in range(7)])
    PL([f"v_lshlrev_b32 v{pH + i}, 16, v{pC + i}" for i in range(7)])
    for i in range(7):
        P(f"s_waitcnt vmcnt({6 + 2 * NA - i})")
        PL([f"v_dot2c_f32_bf16 v{pA + e}, v{pW + 4 * i + e // 2}, v{(pH if e % 2 else pC) + i}" for e in range(8)])
    P("s_nop 2")
    for sh in (4, 8): PL([f"v_add_f32_dpp v{pA + e}, v{pA + e}, v{pA + e} row_ror:{sh} row_mask:0xf bank_mask:0xf" for e in range(8)])
    P(f"""ds_write_b128 v{t2}, {vr(pA, 4)}
ds_write_b128 v{t2}, {vr(pA + 4, 4)} offset:16
s_mul_i32 s{sD}, s2, 4682
s_lshr_b32 s{sD}, s{sD}, 16
s_cmp_lg_u32 s{sW}, 0
s_waitcnt lgkmcnt(0)
s_barrier
s_cbranch_scc1 PRO_B""")
    PL([f"ds_read_b32 v{pA + k}, v{t3} offset:{128 * k}" for k in range(8)])
    P(f"""s_cmp_eq_u32 s{sD}, 1
s_cselect_b32 s{sA}, 1.0, 0
s_cmp_eq_u32 s{sD}, 4
s_cselect_b32 s{sA}, 1.0, s{sA}
s_cmp_lt_u32 s{sD}, 2
s_cselect_b32 s{sB}, {f2u(math.log2(math.e) / 16)}, 1.0
s_cselect_b32 s{sD}, 0, 512
s_lshl_b32 s{sE}, s2, 7
s_add_u32 s{sD}, s{sD}, s{sE}
s_lshl_b32 s{sE}, s2, 2
s_cmp_lt_u32 s2, 28
s_cselect_b32 s{sE}, s{sE}, 192
v_lshlrev_b32 v{t2}, 30, v{t0}
v_lshl_add_u32 v{t2}, v{t1}, 2, v{t2}
v_cmp_eq_u32 vcc, 0, v{L}
v_mov_b32 v{t3}, {OOB}
v_mov_b32 v{pT}, 1
v_cndmask_b32 v{t3}, v{t3}, 0, vcc
s_waitcnt lgkmcnt(0)
v_add_f32 v{pA}, v{pA}, v{pA+1}
v_add_f32 v{pA+2}, v{pA+2}, v{pA+3}
v_add_f32 v{pA+4}, v{pA+4}, v{pA+5}
v_add_f32 v{pA+6}, v{pA+6}, v{pA+7}
v_add_f32 v{pA}, v{pA}, v{pA+2}
v_add_f32 v{pA+4}, v{pA+4}, v{pA+6}
v_add_f32 v{pA}, v{pA}, v{pA+4}
v_mov_b32 v{pA+1}, v{pA}
s_nop 1
v_permlane32_swap_b32 v{pA}, v{pA+1}
v_add_f32 v{pA}, v{pA}, v{pA+1}
v_cvt_pk_bf16_f32 v{pA}, 0, v{pA}
v_add_f32 v{pA}, s{sA}, v{pA}
v_cvt_pk_bf16_f32 v{pA}, 0, v{pA}
v_mul_f32 v{pA}, s{sB}, v{pA}
buffer_store_dword v{pA}, v{t2}, {sr(sWS,4)}, s{sD} offen{SC}
s_waitcnt vmcnt(0)
buffer_atomic_add v{pT}, v{t3}, {sr(sDbg,4)}, s{sE} offen{SC}
PRO_B:""")
    if opt.get('pst'): PL(stamp_lines())
    for s in range(NA, 14): x_dma(s)
    P(f"""s_lshl_b32 s{sD}, s{sHead}, 9
{srd(sWq, KA + 6, f's{sD}', f's_sub_u32 s{sWq+2}, {448 * 8192}, s{sD}')}
v_lshl_add_u32 v{t2}, v{W}, 4, v{t0}
v_lshlrev_b32 v{t2}, 13, v{t2}
v_lshlrev_b32 v{t4}, 1, v{t0}
v_xor_b32 v{t4}, v{t4}, v{t1}
v_lshl_add_u32 v{vDW}, v{t4}, 4, v{t2}
v_xor_b32 v{vDW+1}, 64, v{vDW}
v_xor_b32 v{vDW+2}, 128, v{vDW}
v_xor_b32 v{vDW+3}, 192, v{vDW}
s_lshl_b32 s{sE}, s{sRot[0]}, 1""")
    for c in range(7): P(f"s_lshl_b32 s{sRot[c]}, s{sRot[c]}, 12")
    def w_list(j):
        r = []
        for pre, it, aft in dma_items(j): r.append((pre, it))
        return r
    def w_one(x):
        for y in x[0]: P(y)
        E.item(x[1])
    for x in w_list(0): w_one(x)
    if opt.get('pst'): PL(stamp_lines())
    P(f"""s_mov_b32 s{sKo}, 0
s_mov_b32 s{sVo}, 0
s_mov_b32 s{sThr}, {hex((127 + THR_LOG2) << 23)}
s_lshl_b32 s{sA}, s{sQb}, 2
s_add_u32 s{sA}, s{sA}, s{sW}
s_mul_i32 s{sA}, s{sA}, {2 * P_Q}
s_mul_i32 s{sB}, s{sHead}, {P_H}
s_add_u32 s{sPart}, s{sA}, s{sB}
s_add_u32 s{sPart}, s{sPart}, {WS_PART}
s_lshl_b32 s{sD}, s{sHead}, 20
{srd(sK, KA + 2, f's{sD}', 0x100000)}
{srd(sV, KA + 4, f's{sD}', 0x100000)}
s_mul_i32 s{sD}, s{sHead}, {256 * 896}
{srd(sWo, KA + 8, f's{sD}', 256 * 896)}
s_and_b32 s{sA}, s{sW}, 1
s_mul_i32 s{sD}, s{sA}, {32 * 3584}
s_mul_i32 s{sB}, s{sHead}, 224
s_add_u32 s{sD}, s{sD}, s{sB}
s_mul_i32 s{sGUl}, s{sA}, 7168
s_cmp_lt_u32 s{sW}, 2
s_cselect_b32 s{sGU}, s{KA+12}, s{KA+14}
s_cselect_b32 s{sGU+1}, s{KA+13}, s{KA+15}
s_cselect_b32 s{sA}, 0, 14464
s_add_u32 s{sGUl}, s{sGUl}, s{sA}
{srd(sGU, sGU, f's{sD}', f's_sub_u32 s{sGU+2}, {448 * 3584}, s{sD}')}
s_lshl_b32 s{sF}, s{sQb}, 7
s_lshl_b32 s{sA}, s{sHead}, 2
s_add_u32 s{sF}, s{sF}, s{sA}
s_add_u32 s{sF}, s{sF}, {WS_FLAG}""")
    P(f"""v_and_b32 v{t2}, 15, v{L}
v_lshrrev_b32 v{t3}, 4, v{L}
v_lshlrev_b32 v{vMod}, 5, v{t3}
s_add_u32 s{sE}, s{sE}, {LDS_MOD}
v_add_u32 v{vMod}, s{sE}, v{vMod}
v_xor_b32 v{t3}, v{t3}, v{t2}
v_lshlrev_b32 v{t2}, 9, v{t2}
v_lshl_add_u32 v{t3}, v{t3}, 4, v{t2}
v_add_u32 v{t3}, {SLOT[3]}, v{t3}""")
    for q in range(4): P(f"v_xor_b32 v{vK + q}, {64 * q}, v{t3}")
    P(f"""v_lshrrev_b32 v{t2}, 2, v{L}
v_lshlrev_b32 v{t3}, 9, v{t2}
v_and_b32 v{t2}, 7, v{t2}
v_lshl_add_u32 v{t3}, v{t2}, 5, v{t3}
v_and_b32 v{t2}, 3, v{L}
v_lshl_add_u32 v{t3}, v{t2}, 3, v{t3}
v_lshrrev_b32 v{t2}, 4, v{L}
v_lshl_add_u32 v{t2}, v{t2}, 11, v{t3}""")
    for q in range(8):
        P(f"v_xor_b32 v{vV + q}, {0x10000 + 32 * q}, v{t3}")
        P(f"v_xor_b32 v{vWlo + q}, {32 * q}, v{t2}")
        P(f"v_xor_b32 v{vWhi + q}, {0x10000 + 32 * q}, v{t2}")
    P(f"v_lshlrev_b32 v{t2}, 13, v{W}")
    P(f"v_lshl_add_u32 v{t2}, v{t0}, 9, v{t2}")
    P(f"v_xor_b32 v{t3}, v{t1}, v{t0}")
    P(f"v_lshl_add_u32 v{t3}, v{t3}, 4, v{t2}")
    for q in range(8): P(f"v_xor_b32 v{vDK + q}, {(2 * q) * 16 + (q // 4) * 4096}, v{t3}")
    P(f"v_lshl_add_u32 v{t3}, v{t4}, 4, v{t2}")
    for q in range(8): P(f"v_xor_b32 v{vDV + q}, {(q % 4) * 64 + (q // 4) * 4096}, v{t3}")
    if opt.get('pst'): PL(stamp_lines())
    S1 = 40; S2 = 42; TT = 44; XR = 114
    P(f"""v_bfe_u32 v{t2}, v{L}, 2, 2
v_sub_u32 v{t2}, 0, v{t2}
v_lshrrev_b32 v{t3}, 4, v{L}
v_xor_b32 v{t2}, v{t2}, v{t3}
v_and_b32 v{t2}, 3, v{t2}
v_and_b32 v{t3}, 15, v{L}
v_lshlrev_b32 v{t3}, 6, v{t3}
v_lshl_add_u32 v{t2}, v{t2}, 4, v{t3}
v_add_u32 v{XR}, s{sW8}, v{t2}
v_add_u32 v{XR+1}, 0x10000, v{XR}
v_add_u32 v{XR+2}, 0x20000, v{XR}
s_mov_b32 s{sA}, 0x3f803f80
s_mov_b32 s{sB}, {f2u(1 / 448)}
s_mov_b32 s{sD}, 0xffff0000""")
    PL([f"v_mov_b32 v{S1 + k}, 0" for k in range(4)])
    def x_read(s):
        for qh in range(2):
            o = xl(s, qh)
            E.item(Item(f"ds_read_b128 {vr(vXN + 4 * (14 * qh + s), 4)}, v{XR + o // 65536} offset:{o % 65536}", lds_tag=('xr', s), need_vm=(('x', s),)))
    XLA = 2
    for s in range(XLA): x_read(s)
    if opt.get('pst'): PL(stamp_lines())
    for s in range(14):
        if s + XLA < 14: x_read(s + XLA)
        E.wait_lds((('xr', s),))
        for d in range(4):
            for qh in range(2):
                x = vXN + 4 * (14 * qh + s) + d
                P(f"v_dot2c_f32_bf16 v{S1 + qh}, s{sA}, v{x}\nv_dot2c_f32_bf16 v{S2 + qh}, v{x}, v{x}")
    if opt.get('pst'): PL(stamp_lines())
    wl = [x for j in range(1, NPRE) for x in w_list(j)]
    if wl: w_one(wl.pop(0))
    P("s_nop 2")
    PL(xlane_multi("v_add_f32", [S1, S1 + 1, S2, S2 + 1], [TT, TT + 1, TT + 2, TT + 3]))
    for qh in range(2): P(f"v_mul_f32 v{S1 + qh}, s{sB}, v{S1 + qh}\nv_mul_f32 v{S2 + qh}, s{sB}, v{S2 + qh}")
    for qh in range(2): P(f"v_fma_f32 v{S2 + qh}, -v{S1 + qh}, v{S1 + qh}, v{S2 + qh}")
    for qh in range(2): P(f"v_max_f32 v{S2 + qh}, 0, v{S2 + qh}")
    for qh in range(2): P(f"v_add_f32 v{S2 + qh}, {f2u(1e-5)}, v{S2 + qh}")
    for qh in range(2): P(f"v_rsq_f32 v{S2 + qh}, v{S2 + qh}")
    P("s_nop 0")
    for qh in range(2): P(f"v_mul_f32 v{S1 + qh}, -v{S1 + qh}, v{S2 + qh}")
    for s in range(14):
        for qh in range(2):
            if wl: w_one(wl.pop(0))
            x = vXN + 4 * (14 * qh + s)
            for d in range(4): P(f"v_lshlrev_b32 v{TT+2*d}, 16, v{x+d}\nv_and_b32 v{TT+2*d+1}, s{sD}, v{x+d}")
            for e in range(8): P(f"v_fma_f32 v{TT+e}, v{TT+e}, v{S2+qh}, v{S1+qh}")
            for d in range(4): P(f"v_cvt_pk_f16_f32 v{x+d}, v{TT+2*d}, v{TT+2*d+1}")
    assert not wl
    PL(stamp_lines())
    P(f"""s_cmp_lg_u32 s{sW}, 0
s_cbranch_scc1 PRO_C
v_min_u32 v{t2}, 27, v{L}
v_lshlrev_b32 v{t2}, 2, v{t2}
v_lshlrev_b32 v{t3}, 4, v{L}""")
    poll("POLL0", f"buffer_load_dword v{t4}, v{t2}, {sr(sDbg,4)}, 0 offen{SC}", f"v_cmp_ne_u32 vcc, 0, v{t4}", t4)
    for q in range(4): P(f"buffer_load_dwordx4 {vr(vMV + 4 * q, 4)}, v{t3}, {sr(sWS,4)}, 0 offen" + (f" offset:{1024 * q}" if q else "") + SC)
    P(f"""v_cmp_gt_u32 vcc, 48, v{L}
v_add_u32 v{t3}, {LDS_MOD}, v{t3}
v_add_u32 v{t2}, 1792, v{t3}
v_cndmask_b32 v{t2}, v{t2}, v{t3}, vcc""")
    for cp in range(2):
        for q in range(4):
            if cp == 0: P(f"s_waitcnt vmcnt({3 - q})")
            P(f"ds_write_b128 v{t2 if q == 1 else t3}, {vr(vMV + 4 * q, 4)} offset:{1024 * q + 1792 * cp + (1792 if q >= 2 else 0)}")
    P("s_waitcnt lgkmcnt(0)\nPRO_C:")
    for j in range(NPRE, 4):
        for x in w_list(j): w_one(x)
    head = E.out; E.out = []

    def bar(E, it):
        j = it[1]
        if j > 0: E.wait_lds((('f', j - 1, 31),))
        E.wait_vm((('tile', j),))
    segs = S_.emit(E, G, MINAGE, bar)

    import tail
    tl = tail.gen_tail(E, opt, poll, stamp_lines, gu_dma, put_dma, GU_SLOT)

    clean = lambda l: [x.replace('@RARE0@', 'R').replace('@RARE1@', 'R').replace('@BACK@', 'B') for x in l]
    best = (0, 0)
    for a in range(len(segs)):
        b = a
        while b + 4 < len(segs) and segs[b] == segs[b + 4]: b += 1
        ntrip = (b + 4 - a) // 4
        if ntrip > best[1]: best = (a, ntrip)
    a, ntrip = best
    out = list(head)
    stubs = []
    cnt = [0]
    def put(seg, k=None):
        if stamps is not None and k in stamps: out.extend(stamp_lines())
        for x in seg:
            if '@RARE' in x:
                cnt[0] += 1
                par = x[x.index('@RARE') + 5]
                stubs.extend([f"K_STUB{cnt[0]}:", f"s_call_b64 {sr(sRet,2)}, K_RARE{par}", f"s_branch K_BACK{cnt[0]}"])
                x = x.replace(f'@RARE{par}@', f"K_STUB{cnt[0]}")
            x = x.replace('@BACK@', f"K_BACK{cnt[0]}")
            out.append(x)
    for k, s in enumerate(segs[:a]): put(s, k)
    out.extend(stamp_lines())
    out.append(f"s_mov_b32 s{sCnt}, {ntrip - 1}")
    if opt.get('align'): out.append(f".p2align {opt['align']}")
    out.append("K_LOOP:")
    abl = [_re.compile(x) for x in opt.get('ablate', [])]
    for s in segs[a:a + 4]: put([x for x in s if not any(r.search(x) for r in abl)])
    out += [f"s_sub_u32 s{sCnt}, s{sCnt}, 1", "s_cbranch_scc0 K_LOOP"]
    rest = segs[a + 4 * ntrip:]
    if stamps is not None: out.append(f"v_mov_b32 v{vSTMP}, v255"); streg[0] = vSTMP
    out.extend(stamp_lines())
    abl2 = [_re.compile(x) for x in opt.get('ablate2', [])]
    for k, s in enumerate(rest): put([x for x in s if not any(r.search(x) for r in abl2)], k + len(segs) - len(rest))
    tl = [y for x in tl for y in (stamp_lines() if x == '@STAMP@' else [x])]
    out += tl
    errs = check_hazards(clean(head + [x for s in segs for x in s] + tl), 'main')
    out.append("K_FIN:")
    if stamps is not None:
        out += ["s_waitcnt vmcnt(0)"] + stamp_lines()
        out += [f"s_lshl_b32 s{sA}, s2, 2", f"s_add_u32 s{sA}, s{sA}, s{sW}", f"s_lshl_b32 s{sA}, s{sA}, 8", f"s_add_u32 s{sA}, s{sA}, {WS_END}",
                "v_and_b32 v1, 63, v0", "v_lshlrev_b32 v1, 2, v1", f"buffer_store_dword v{vSTMP}, v1, {sr(sWS,4)}, s{sA} offen"]
    if opt.get('probe'):
        k0, k1 = opt['probe']
        out += [f"v_readlane_b32 s96, v{vSTMP}, 1", f"v_readlane_b32 s97, v{vSTMP}, {2 * k0 + 1}", f"v_readlane_b32 s95, v{vSTMP}, {2 * k1 + 1}", "s_nop 4",
                "s_sub_u32 s95, s95, s97", "s_min_u32 s95, s95, 15000", "s_add_u32 s95, s95, 15000", "PRB:", "s_memrealtime s[98:99]", "s_waitcnt lgkmcnt(0)", "s_sub_u32 s98, s98, s96",
                "s_cmp_lt_u32 s98, s95", "s_cbranch_scc1 PRB"]
    out += ["K_END:", "s_endpgm"]
    out += stubs
    E.out = ["CHK_SLOW:"]
    poll("POLLC", CHKLD, f"v_cmp_eq_u32 vcc, v{o0+1}, v{o0+2}", o0 + 2)
    out += E.out + ["s_branch CHK_BACK"]; E.out = []
    for b in range(2):
        r = [f"K_RARE{b}:", "s_nop 15"]
        r += [x.text for x in max_items(b, [0, 1, 2, 3], vTM, True)]
        for qh in range(2):
            r += [x.text for x in xlane_reduce("v_max_f32", vTM + qh, vTM + 2)]
            r += [f"v_max_f32 v{vTM + qh}, 0, v{vTM + qh}"]
        for qh in range(2):
            r += [f"v_sub_f32 v{vTM + 2 + qh}, 0, v{vTM + qh}", f"v_exp_f32 v{vTM + 2 + qh}, v{vTM + 2 + qh}"]
        for qh in range(2):
            regs = [Sr(bb, kb, qh) + e for bb in range(2) for kb in range(4) for e in range(4)] + [vNEG + 4 * qh + e for e in range(4)]
            r += [f"v_sub_f32 v{x}, v{x}, v{vTM + qh}" for x in regs]
            r += [f"v_mul_f32 v{vL + qh}, v{vL + qh}, v{vTM + 2 + qh}"]
        for q in range(0, 128, 8):
            r += [f"v_accvgpr_read_b32 v{vT + e}, a{aO + q + e}" for e in range(8)]
            r += [f"v_mul_f32 v{vT + e}, v{vT + e}, v{vTM + 2 + e // 4}" for e in range(8)]
            r += [f"v_accvgpr_write_b32 a{aO + q + e}, v{vT + e}" for e in range(8)]
        r += [x.text for x in sm_items(b)]
        r += ["s_nop 4", f"s_setpc_b64 {sr(sRet,2)}"]
        errs += check_hazards(r, f'rare{b}')
        out += r
    info = dict(loop_start=a, ntrip=ntrip, nseg=len(segs), nstamps=nst[0])
    return out, errs, info
```

```python
from asmlib import *
import math, re as _re

WS_MOD  = 0
WS_GA = 4096; WS_B0 = 4096 + 1792; WS_B1 = 4096 + 3584; WS_GB = 4096 + 5376
WS_FLAG = 16384
WS_GR   = 32768
FRAGB   = 128 * 14 * 1024
WS_H2   = 1 << 20
WS_X1   = WS_H2 + (2 << 20)
WS_HH   = WS_X1 + (4 << 20)
WS_PART = WS_HH + (8 << 20)
WS_END  = WS_PART + 16 * FRAGB
WS_SIZE = 268435456
OOB = 0x40000000
DEF_PLAY = 1
PLAY = [(2048, FRAGB, 14336), (1 << 22, 1 << 18, 2048), (1 << 22, 2048, 32768)]

SLOT = [0, 65536, 32768, 98304]
LDS_MOD = 131072
LDS_A1  = 8192
LDS_SCR = 131072 + 16384
LDS_LN  = 131072 + 29184
LDS_TOT = 163840

vK = 1; vV = 5; vDK = 13; vDV = 21; vL = 29; vPS = 31; vTM = 33; vSTMP = 39; vT = 40; vNEG = 48; vGU = 56; vFst = 63; vQ = 64
vS = [128, 160]; vP = [192, 208]
vHB = 32; vMV = 64; vFT = 96; vXN = 128; vWr = 240; vDW = 248; vMod = 250; vRS = 251; vNM = 31; vQT = 192
vOB = 64; vOA = [128, 160]; vST = [192, 208]; vWoA = 224; vDWo = 232; vL16 = 233; vRL = 236; vOT = 240
aO = 0; aQA = 0; aF = 128
sK = 4; sV = 8; sWq = 12; sWo = 16; sWS = 20; sW8 = 24; sKo = 25; sVo = 26; sCnt = 27; sThr = 28; sTmp = 29; sRet = 30; sPart = 32; sXo = 33
sGUl = 34; sT2 = 35
sX = 36; sDbg = 40; sGU = 44; sWm = 48; sC = 52; sW = 56; sHead = 57; sQb = 58; sA = 59; sB = 60; sD = 61; sE = 62; sF = 63
sDn = 12; sOut = 48
KA = 64
sRot = [92, 93, 94, 95, 100, 101, 35]

MF = "v_mfma_f32_16x16x32_bf16"
MF32 = "v_mfma_f32_32x32x16_bf16"
THR_LOG2 = 64
G = 64
POLLMAX = 1 << 14
def f2u(x):
    import struct
    return hex(struct.unpack('<I', struct.pack('<f', x))[0])

class Sched:
    def __init__(self, NG, opt):
        self.NG = NG
        self.mf = [None] * NG
        self.need = [()] * NG
        self.needvm = [()] * NG
        self.fixed = [[] for _ in range(NG + 1)]
        self.valu = [[] for _ in range(NG + 1)]
        self.post = [[] for _ in range(NG + 1)]
        self.free_nv = opt.get('free_nv', 0)
    def cost(self, g):
        c = sum((2 if isinstance(x, tuple) else x.cost) for x in self.fixed[g])
        c = max(0, c - self.free_nv)
        return c + sum(x.cost for x in self.valu[g]) + sum(x.cost for x in self.post[g])
    def spread(self, items, g0, g1):
        items = [Item(x) if isinstance(x, str) else x for x in items]
        tot = sum(x.cost for x in items)
        base = [self.cost(g) for g in range(g0, g1 + 1)]
        lo, hi = 0.0, 1000.0
        for _ in range(50):
            m = (lo + hi) / 2
            if sum(max(0, m - b) for b in base) >= tot: hi = m
            else: lo = m
        cum = 0.0; done = 0.0; k = 0
        for g in range(g0, g1 + 1):
            cum += max(0, hi - base[g - g0])
            while k < len(items) and (done + items[k].cost / 2 <= cum + 1e-6 or g == g1):
                self.valu[g].append(items[k]); done += items[k].cost; k += 1
        assert k == len(items)
    def stream(self, groups, cap):
        g = 0
        for e, items in groups:
            g = max(g, min(e, self.NG))
            for it in items:
                it = Item(it) if isinstance(it, str) else it
                while g < self.NG and self.cost(g) + it.cost > cap + (0.5 if it.cost > 1 else 0): g += 1
                self.valu[g].append(it)
    def place_reads(self, g0, reads, first_use, rd_last, dist):
        flat = [(it, first_use[f]) for f, r in enumerate(reads) for it in r]
        n = len(flat)
        pos = [min(g0 + (k * (rd_last + 1)) // n, flat[k][1] - dist) for k in range(n)]
        for k in range(n - 2, -1, -1):
            pos[k] = min(pos[k], pos[k + 1])
            if k + 2 < n and pos[k] == pos[k + 2]: pos[k] -= 1
        for k in range(n):
            self.fixed[max(pos[k], g0)].append(flat[k][0])
    def emit(self, E, G, minage, bar):
        segs = []
        for n in range(self.NG + 1):
            if n % G == 0 and n:
                segs.append(E.out); E.out = []
            E.time = n
            if n < self.NG and self.mf[n] is not None:
                E.wait_lds(self.need[n], minage)
                if self.needvm[n]: E.wait_vm(self.needvm[n])
                E.raw(self.mf[n])
            for it in self.fixed[n]:
                if isinstance(it, tuple):
                    bar(E, it)
                    if len(E.out) >= 2 and E.out[-1].startswith('s_waitcnt vm') and E.out[-2].startswith('s_waitcnt lgkm'):
                        a = E.out.pop(); b = E.out.pop(); E.raw(a + ' ' + b.split()[1])
                    E.raw("s_barrier")
                else:
                    if it.text.endswith('lds') and E.out and ' m0,' in E.out[-1]: E.raw('s_nop 0')
                    E.item(it)
            for it in self.valu[n] + self.post[n]: E.item(it, minage)
        segs.append(E.out); E.out = []
        return segs

def xlane_reduce(op, a, t):
    return [Item(f"v_mov_b32 v{t}, v{a}"), Item("s_nop 1", cost=2), Item(f"v_permlane32_swap_b32 v{a}, v{t}"), Item(f"{op} v{a}, v{a}, v{t}"),
            Item(f"v_mov_b32 v{t}, v{a}"), Item("s_nop 1", cost=2), Item(f"v_permlane16_swap_b32 v{a}, v{t}"), Item(f"{op} v{a}, v{a}, v{t}")]
def xlane_multi(op, regs, tmps):
    r = []
    for sw in ('32', '16'):
        r += [f"v_mov_b32 v{t}, v{a}" for a, t in zip(regs, tmps)] + ["s_nop 1"]
        r += [f"v_permlane{sw}_swap_b32 v{a}, v{t}" for a, t in zip(regs, tmps)]
        r += [f"{op} v{a}, v{a}, v{t}" for a, t in zip(regs, tmps)]
    return r
def srd(d, plo, off, size):
    if off is None: r = [f"s_mov_b32 s{d}, s{plo}", f"s_mov_b32 s{d+1}, s{plo+1}"]
    else: r = [f"s_add_u32 s{d}, s{plo}, {off}", f"s_addc_u32 s{d+1}, s{plo+1}, 0"]
    r.append(size if isinstance(size, str) else f"s_mov_b32 s{d+2}, {size}")
    r.append(f"s_mov_b32 s{d+3}, 0x20000")
    return "\n".join(r)

def gen(opt=None):
    opt = opt or {}
    SH = opt.get('shift', 12)
    RD_LAST = opt.get('rd_last', 55)
    MINAGE = opt.get('minage', 6)
    DIST = opt.get('dist', 10)
    NPRE = opt.get('npre', 1)
    SC = ' sc1'
    P_C, P_H, P_Q = PLAY[opt.get('play', DEF_PLAY)]
    NPH = 78
    NG = NPH * G + SH
    S_ = Sched(NG, opt)
    mf = S_.mf; fixed = S_.fixed; valu = S_.valu; post = S_.post; spread = S_.spread
    stamps = opt.get('stamps')
    nst = [0]; streg = [255]
    def stamp_lines():
        if stamps is None: return []
        k = nst[0]; nst[0] += 1
        return ["s_memtime s[96:97]", "s_memrealtime s[98:99]", "s_waitcnt lgkmcnt(0)", f"v_writelane_b32 v{streg[0]}, s96, {2 * k}", f"v_writelane_b32 v{streg[0]}, s98, {2 * k + 1}"]

    def phase_kind(j):
        if j < 7: return ('W', j)
        if j == 7: return ('K', 0)
        if j <= 69: return ('K', (j - 6) // 2) if j % 2 == 0 else ('V', (j - 9) // 2)
        if j == 70: return ('V', 31)
        return ('O', j - 71)
    def slot_of(j):
        if j <= 69: return j % 4
        return {70: 3, 71: 2, 72: 0, 73: 1, 74: 3, 75: 2, 76: 0, 77: 1}[j]
    def dma_seg(j):
        if j < 4: return None
        if j <= 69: return j - 3
        return {70: 68, 71: 67, 72: 69, 73: 70, 74: 71, 75: 72, 76: 73, 77: 74}[j]
    N0 = lambda j: G * j + SH
    dmod = opt.get('dma_mod', '')

    def dma_items(j):
        kind, t = phase_kind(j); sl = SLOT[slot_of(j)]
        its = []
        for q in range(8):
            pre = []
            if q % 4 == 0: pre.append(f"s_add_u32 m0, s{sW8}, {sl + (q // 4) * 4096}")
            imm = (q % 4) * 1024
            off = f" offset:{imm}" if imm else ""
            if kind == 'K':
                ld = f"buffer_load_dwordx4 v{vDK + q}, {sr(sK,4)}, s{sKo} offen{off}{dmod} lds"
            elif kind == 'V':
                ld = f"buffer_load_dwordx4 v{vDV + q}, {sr(sV,4)}, s{sVo} offen{off}{dmod} lds"
            elif kind == 'W':
                pre.append(f"s_add_u32 s{sTmp}, s{sRot[t]}, {2 * q * 8192 - imm}" if q else f"s_mov_b32 s{sTmp}, s{sRot[t]}")
                ld = f"buffer_load_dwordx4 v{vDW + (q & 1)}, {sr(sWq,4)}, s{sTmp} offen{off} lds"
            else:
                pre.append(f"s_mov_b32 s{sTmp}, {8 * q * 896 + (0 if opt.get('wo_same') else 128 * t) - imm}")
                ld = f"buffer_load_dwordx4 v{vDWo}, {sr(sWo,4)}, s{sTmp} offen{off} lds"
            aft = []
            if q == 7 and kind == 'K': aft.append(f"s_add_u32 s{sKo}, s{sKo}, 32768")
            if q == 7 and kind == 'V': aft.append(f"s_add_u32 s{sVo}, s{sVo}, 32768")
            its.append((pre, Item(ld, vm_tag=('tile', j), cost=opt.get('dma_cost', 1)), aft))
        return its
    GU_SLOT = [131072, 98304, 32768, 0, 65536, 131072, 98304]
    def gu_dma(c):
        its = []
        for q in range(7):
            pre = []
            if q == 0: pre.append(f"s_mov_b32 s{sTmp}, {(0 if opt.get('gu_same') else c) * 64 * 3584}")
            if q % 4 == 0: pre.append(f"s_add_u32 m0, s{sGUl}, {GU_SLOT[c] + (q // 4) * 4096}")
            imm = (q % 4) * 1024
            off = f" offset:{imm}" if imm else ""
            its.append((pre, Item(f"buffer_load_dwordx4 v{vGU + q}, {sr(sGU,4)}, s{sTmp} offen{off} lds", vm_tag=('gu', c)), []))
        return its

    Qr = lambda s, qh: vQ + 8 * s + 4 * qh
    Sr = lambda b, kb, qh: vS[b] + (2 * kb + qh) * 4
    Pr = lambda b, qh, ks: vP[b] + 8 * qh + 4 * ks
    last_write = {}
    first_read = {}
    hfirst = {}; hlast = {}; P7 = opt.get('p7', 4)
    for j in range(NPH):
        kind, t = phase_kind(j); sl = SLOT[slot_of(j)]
        if kind == 'W':
            nk = 4 if t < 6 else opt.get('p6', 0)
            order = [(T, ks) for ks in range(nk) for T in range(8)] + [(T, ks) for T in range(8) for ks in range(nk, 4)]
            reads = []; first = []
            for p, (T, ks) in enumerate(order):
                n = N0(j) + 2 * p; f = aF + 4 * p; kap = 4 * t + ks
                base = vWr + (T & 3) + (4 if sl >= 65536 else 0); o = sl % 65536 + ks * 8192 + (T >> 2) * 256
                reads.append([Item(f"ds_read_b64_tr_b16 {ar(f + 2 * z, 2)}, v{base} offset:{o + 2048 * z}", lds_tag=('f', j, p)) for z in range(2)]); first.append(n)
                acc = ar(aQA + 16 * T, 16)
                mf[n] = f"{MF32} {acc}, {ar(f,4)}, {vr(vHB + 4 * (kap % 8), 4)}, {acc if kap else 0}"
                last_write[(j, T)] = n; hfirst.setdefault(kap, n); hlast[kap] = n
                S_.need[n] = (('f', j, p),)
            fixed[G * j].append(('BAR', j))
            S_.place_reads(G * j, reads, first, RD_LAST, DIST)
            continue
        if kind == 'V':
            vo = opt.get('vo', 0) if t < 31 else 0
            order = [[((dt, ks), qh) for dt in range(16) for qh in range(2) for ks in range(2)],
                     [((dt, ks), qh) for dt in range(16) for ks in range(2) for qh in range(2)],
                     [((dt, ks), qh) for dt in range(16) for ks, qh in ((0, 0), (0, 1), (1, 1), (1, 0))],
                     [((2 * d2 + e, ks), qh) for d2 in range(8) for ks in range(2) for qh in range(2) for e in range(2)],
                     [((2 * d2 + e, ks), qh) for d2 in range(8) for ks in range(2) for e, qh in ((0, 0), (1, 0), (1, 1), (0, 1))]][vo]
        elif kind == 'K':
            ns = P7 if t == 0 else 0
            order = [((kb, s), qh) for s in range(ns) for kb in range(4) for qh in range(2)] + [((kb, s), qh) for kb in range(4) for qh in range(2) for s in range(ns, 8)]
            ko = opt.get('ko', 0) if t > 1 else 0
            if ko == 1: order = [((kb, s), qh) for kb in range(4) for s in range(8) for qh in range(2)]
            if ko == 2: order = [((kb, s), qh ^ (s & 1)) for kb in range(4) for s in range(8) for qh in range(2)]
            if ko == 3: order = [((2 * k2 + e, s), qh) for k2 in range(2) for s in range(8) for e, qh in ((0, 0), (1, 0), (1, 1), (0, 1))]
        else:
            if t == 0: order = [((nt, ks), qh) for ks in range(8) for nt in range(4) for qh in range(2)]
            else: order = [((nt, ks), qh) for nt in range(4) for qh in range(2) for ks in range(8)]
        fidx = {}; reads = []; first = []
        started = set()
        for p, (key, qh) in enumerate(order):
            n = N0(j) + p
            if key not in fidx:
                fi = len(fidx); fidx[key] = fi; f = aF + 4 * fi; tag = ('f', j, fi)
                if kind == 'V':
                    dt, ks = key
                    base = vV + (dt & 7)
                    assert sl >= 65536
                    o = (sl % 65536) + 32 * ks * 512 + (dt >> 3) * 256
                    rd = [f"ds_read_b64_tr_b16 {ar(f,2)}, v{base} offset:{o}", f"ds_read_b64_tr_b16 {ar(f+2,2)}, v{base} offset:{o + 16 * 512}"]
                elif kind == 'K':
                    kb, s = key
                    o = (0 if t == 0 else sl) + kb * 8192 + (s >> 2) * 256
                    rd = [f"ds_read_b128 {ar(f,4)}, v{vK + (s & 3)} offset:{o}"]
                else:
                    nt, ks = key
                    base = vWoA + nt + (4 if sl >= 65536 else 0)
                    o = (sl % 65536) + 32 * ks * 128
                    rd = [f"ds_read_b64_tr_b16 {ar(f,2)}, v{base} offset:{o}", f"ds_read_b64_tr_b16 {ar(f+2,2)}, v{base} offset:{o + 16 * 128}"]
                reads.append([Item(x, lds_tag=tag) for x in rd]); first.append(n)
            fi = fidx[key]; f = aF + 4 * fi
            accname = (key[0], qh)
            isfirst = accname not in started; started.add(accname)
            if False: pass
            elif kind == 'K':
                kb, s = key
                acc = vr(Sr(t % 2, kb, qh), 4)
                c = acc if not isfirst else (0 if t < 1 else vr(vNEG + 4 * qh, 4))
                mf[n] = f"{MF} {acc}, {ar(f,4)}, {vr(Qr(s, qh), 4)}, {c}"
                first_read.setdefault((j, s, qh), n)
            elif kind == 'V':
                dt, ks = key
                acc = ar(aO + 8 * dt + 4 * qh, 4)
                mf[n] = f"{MF} {acc}, {ar(f,4)}, {vr(Pr(t % 2, qh, ks), 4)}, {0 if (t == 0 and isfirst) else acc}"
            else:
                nt, ks = key
                acc = vr(vOA[t % 2] + 8 * nt + 4 * qh, 4)
                mf[n] = f"{MF} {acc}, {ar(f,4)}, {vr(vOB + 8 * ks + 4 * qh, 4)}, {0 if isfirst else acc}"
                first_read.setdefault((j, ks, qh), n)
            last_write[(j,) + accname] = n
            S_.need[n] = (('f', j, fi),)
        fixed[G * j].append(('BAR', j))
        S_.place_reads(G * j, reads, first, RD_LAST, DIST)
    DMA0 = opt.get('dma0', 5); DMAST = opt.get('dma_step', 7)
    def put_dma(S, its, g0, step):
        for q, (pre, it, aft) in enumerate(its):
            g = g0 + q * step
            for k, x in enumerate(pre): S.fixed[g - len(pre) + k].append(Item(x))
            S.fixed[g].append(it)
            for x in aft: S.fixed[g + 1].append(Item(x))
    for j in range(4, NPH): put_dma(S_, dma_items(j), G * dma_seg(j) + DMA0, DMAST)
    put_dma(S_, [x for j in range(NPRE, 4) for x in dma_items(j)], opt.get('w0', SH + 2 if NPRE > 1 else 4), 3 if NPRE > 1 else 2)
    put_dma(S_, gu_dma(0) + gu_dma(1), G * 75 + 4, 4)
    put_dma(S_, gu_dma(2), G * 76 + DMA0, DMAST)
    put_dma(S_, gu_dma(3), G * 77 + DMA0, 5)

    HZ = 4
    sMsk = sD
    def mod_reads(k):
        return [Item(f"ds_read_b128 {vr(vMV + 16 * (k % 2) + 4 * q, 4)}, v{vMod} offset:{k * 64 + 16 * (q & 1) + (LDS_A1 if q < 2 else 0)}", lds_tag=('m', k)) for q in range(4)]
    tn = lambda k: vFT + 8 * (k % 4)
    PN = opt.get('pn', 24)
    def n_items(k, T=None):
        x = vXN + 4 * k
        pre = T is None and 4 <= k < 4 + PN
        if T is None: T = tn(k)
        its = [(f"v_and_b32 v{T + e}, s{sMsk}, v{x + e // 2}" if e % 2 else f"v_lshlrev_b32 v{T + e}, 16, v{x + e // 2}") for e in range(8)]
        return [Item(y) for y in its + ([] if pre else [f"v_fma_f32 v{T + e}, v{T + e}, v{vRS}, v{vNM}" for e in range(8)])]
    def h_items(k):
        mv = vMV + 16 * (k % 2); T = tn(k)
        its = [Item(f"v_fmac_f32 v{mv + 8 + e}, v{T + e}, v{mv + e}", need_lds=((('m', k),) if e == 0 else ())) for e in range(8)]
        return its + [Item(f"v_cvt_pk_bf16_f32 v{vHB + 4 * (k % 8) + q}, v{mv + 8 + 2 * q}, v{mv + 9 + 2 * q}") for q in range(4)]
    fixed[0][1:1] = [Item(f"s_cbranch_scc1 LATE_F\nLATE_FB:")] + mod_reads(0) + mod_reads(1)
    spread(h_items(0) + [Item('s_nop 0')], SH - 6, SH - 2)
    strm = []; KW = opt.get('kw', 3)
    for k in range(1, 28):
        its = (n_items(k) if k >= 4 else []) + h_items(k)
        if k + 1 < 28:
            st = (len(its) - 4) // 4
            for q, r in reversed(list(enumerate(mod_reads(k + 1)))): its.insert(4 + st * q, r)
        strm += its
        if k <= KW: spread(its, max(SH - 1, hfirst[k - 1] - 2), hfirst[k] - 3); k0 = len(strm)
    spread(strm[k0:], hfirst[KW] - 2, hfirst[27] - 3)
    where = {id(it): g for g in range(NG) for it in valu[g]}
    k = 1
    for it in strm:
        if it.text.startswith(f"v_cvt_pk_bf16_f32 v{vHB + 4 * (k % 8)},"): assert k < 8 or where[id(it)] > hlast[k - 8], k
        if it.text.startswith(f"v_cvt_pk_bf16_f32 v{vHB + 4 * (k % 8) + 3},"):
            assert where[id(it)] <= hfirst[k] - 2, (k, where[id(it)], hfirst[k]); k += 1
    q0 = last_write[(6, 0)] + 6; qw = (first_read[(7, 7, 0)] - 2 - q0) / 8
    for T in range(8):
        q = Qr(T, 0); tb = vQT + 16 * (T & 1)
        its = []
        for m in range(8):
            its += [f"v_accvgpr_read_b32 v{tb + 2 * m + e}, a{aQA + 16 * T + 2 * m + e}" for e in range(2)]
            if m: its.append(f"v_cvt_pk_bf16_f32 v{q + m - 1}, v{tb + 2 * m - 2}, v{tb + 2 * m - 1}")
        its += [f"v_cvt_pk_bf16_f32 v{q + 7}, v{tb + 14}, v{tb + 15}"] + [f"v_permlane16_swap_b32 v{q + m}, v{q + 4 + m}" for m in range(4)]
        lo = q0 + int(T * qw); hi = q0 + int((T + 1) * qw) - 1
        assert lo >= last_write[(6, T)] + 4 and hi <= first_read[(7, T, 0)] - 2, (T, lo, hi)
        spread(its, lo, hi)
    spread([f"v_subrev_u32 v{vK + q}, {SLOT[3]}, v{vK + q}" for q in range(4)], G * 7 + RD_LAST + 1, G * 8 - 1)

    def sm_items(b, sub=False):
        pairs = [(kb, qh, h) for kb in range(4) for qh in range(2) for h in range(2)]
        def ex(k):
            kb, qh, h = pairs[k]; s = Sr(b, kb, qh) + 2 * h
            r = []
            if sub: r += [Item(f"v_add_f32 v{s + e}, v{vNEG + 4 * qh}, v{s + e}") for e in range(2)]
            r += [Item(f"v_exp_f32 v{vT + 2 * (k % 4) + e}, v{s + e}", cost=2) for e in range(2)]
            return r
        def fin(k):
            kb, qh, h = pairs[k]; a = vT + 2 * (k % 4); ps = vPS + qh
            cv = Item(f"v_cvt_pk_bf16_f32 v{Pr(b, qh, kb // 2) + 2 * (kb % 2) + h}, v{a}, v{a + 1}")
            if kb == 0 and h == 0: return [Item(f"v_add_f32 v{ps}, v{a}, v{a + 1}"), cv]
            return [Item(f"v_add_f32 v{ps}, v{a}, v{ps}"), cv, Item(f"v_add_f32 v{ps}, v{a + 1}, v{ps}")]
        seq = ex(0)
        for k in range(1, 16):
            e = ex(k); f = fin(k - 1)
            seq += e[:-1] + f[:1] + e[-1:] + f[1:]
        seq += fin(15)
        return seq
    def max_items(b, kbs, dst, init):
        its = []
        for qh in range(2):
            regs = [Sr(b, kb, qh) + r for kb in kbs for r in range(4)]
            d = dst + qh
            if init:
                its.append(Item(f"v_max3_f32 v{d}, v{regs[0]}, v{regs[1]}, v{regs[2]}")); regs = regs[3:]
            while len(regs) >= 2:
                its.append(Item(f"v_max3_f32 v{d}, v{d}, v{regs[0]}, v{regs[1]}")); regs = regs[2:]
            if regs: its.append(Item(f"v_max_f32 v{d}, v{d}, v{regs[0]}"))
        return its
    jK = lambda t: 7 if t == 0 else 2 * t + 6
    jV = lambda t: 70 if t == 31 else 2 * t + 9

    o0 = vOT
    ep_addr = [
        f"v_and_b32 v{o0}, 63, v0",
        f"v_lshlrev_b32 v{vL16}, 4, v{o0}",
        f"v_add_u32 v{vL16+1}, {P_Q}, v{vL16}",
        f"v_lshrrev_b32 v{o0+1}, 3, v{o0}",
        f"v_lshrrev_b32 v{o0+2}, 6, v0",
        f"v_lshl_add_u32 v{o0+1}, v{o0+2}, 6, v{o0+1}",
        f"v_mul_u32_u24 v{o0+1}, 896, v{o0+1}",
        f"v_lshrrev_b32 v{o0+2}, 3, v{o0}",
        f"v_and_b32 v{o0+2}, 6, v{o0+2}",
        f"v_and_b32 v{o0+3}, 7, v{o0}",
        f"v_xor_b32 v{o0+2}, v{o0+2}, v{o0+3}",
        f"v_lshl_add_u32 v{vDWo}, v{o0+2}, 4, v{o0+1}",
        f"v_lshrrev_b32 v{o0+1}, 2, v{o0}",
        f"v_lshlrev_b32 v{o0+1}, 7, v{o0+1}",
        f"v_bfe_u32 v{o0+2}, v{o0}, 3, 2",
        f"v_lshl_add_u32 v{o0+1}, v{o0+2}, 5, v{o0+1}",
        f"v_and_b32 v{o0+2}, 3, v{o0}",
        f"v_lshl_add_u32 v{vWoA}, v{o0+2}, 3, v{o0+1}",
    ] + [f"v_xor_b32 v{vWoA+q}, {32 * q}, v{vWoA}" for q in range(1, 4)] + [f"v_add_u32 v{vWoA+4+q}, 0x10000, v{vWoA+q}" for q in range(4)]
    for q in range(7):
        ep_addr += [f"v_add_u32 v{o0+1}, {64 * q}, v{o0}", f"v_mul_u32_u24 v{o0+1}, 4682, v{o0+1}", f"v_lshrrev_b32 v{o0+1}, 16, v{o0+1}",
                    f"v_mul_u32_u24 v{o0+1}, 3360, v{o0+1}", f"v_add3_u32 v{vGU+q}, v{o0+1}, v{vL16}, {'s%d' % sD if q >= 4 else 0}"]
    ep_addr.insert(0, f"s_mov_b32 s{sD}, 4096")
    spread([x.replace(f"v{o0+3}", "v251").replace(f"v{o0+2}", "v250") for x in ep_addr], N0(9) + 52, N0(11) - 4)
    spread([f"v_mov_b32 v{o0+1}, {OOB}", "v_cmp_eq_u32 vcc, 0, v0", f"v_mov_b32 v{o0+2}, 0", f"v_mov_b32 v{o0+3}, 1",
            f"v_cndmask_b32 v{vFst}, v{o0+1}, v{o0+2}, vcc", f"v_mov_b32 v{vL}, 0", f"v_mov_b32 v{vL+1}, 0"], first_read[(7, 7, 0)], first_read[(7, 7, 0)] + 6)
    fixed[N0(8) + 2].append(Item(f"buffer_store_dword v{o0+2}, v{vFst}, {sr(sWS,4)}, s{sF} offen{SC}", vm_tag='fz'))
    fixed[G * 11 + 2].append(Item(f"s_and_b32 s{sE}, s2, 15\ns_lshl_b32 s{sE}, s{sE}, 2", cost=2))
    fixed[G * 11 + 3].append(Item(f"buffer_atomic_add v{o0+3}, v{vFst}, {sr(sDbg,4)}, s{sE} offen offset:128{SC}", need_vm=('fz',)))
    chk = [f"v_and_b32 v{o0}, 15, v0", f"v_cmp_gt_u32 vcc, 64, v0", f"v_lshlrev_b32 v{o0}, 2, v{o0}", f"v_mov_b32 v{o0+2}, {OOB}",
           f"v_cndmask_b32 v{o0}, v{o0+2}, v{o0}, vcc", f"v_cndmask_b32 v{o0+1}, 0, 16, vcc"]
    CH0 = N0(65) + 4
    for k, x in enumerate(chk): fixed[CH0 + k].append(Item(x))
    CHKLD = f"buffer_load_dword v{o0+2}, v{o0}, {sr(sDbg,4)}, 0 offen offset:128{SC}"
    fixed[CH0 + len(chk) + 1].append(Item(CHKLD, vm_tag='chk'))
    fixed[N0(69) + 4].append(Item(f"v_cmp_gt_u32 vcc, v{o0+1}, v{o0+2}", need_vm=('chk',)))
    fixed[N0(69) + 6].append(Item("s_cbranch_vccnz CHK_SLOW\nCHK_BACK:"))

    MAP = opt.get('map', 2)
    NTE = opt.get('nte', 3)
    if NTE:
        vTa = 244; vTd = 247; u = 248; NID = 128 >> MAP; T0 = 13 - NTE
        LW = -(-1792 // (NTE * NID)); RW = -(-448 // (NTE * NID // 2)); LD = -(-12544 // (NTE * 1024))
        BLK = [NID * LW * 128, RW * (NID // 2) * 3584, 1024 * LD * 128]
        def oob(d, n): return [f"v_sub_u32 v{u+1}, {n - 1}, v{u}", f"v_and_b32 v{u+1}, {OOB}, v{u+1}", f"v_add_u32 v{d}, v{d}, v{u+1}"]
        ta = [f"v_and_b32 v{u}, 63, v0",
              f"s_and_b32 s{sA}, s{sQb}, {(32 >> MAP) - 1}", f"s_lshl2_add_u32 s{sB}, s{sA}, s{sW}", f"s_mul_i32 s{sB}, s{sB}, {LW * 128}", f"s_sub_u32 s{sB}, s{sB}, {T0 * BLK[0]}",
              f"v_lshl_add_u32 v{vTa}, v{u}, 7, s{sB}"] + oob(vTa, LW)
        ta += [f"s_and_b32 s{sB}, s{sW}, 1", f"s_lshl1_add_u32 s{sB}, s{sA}, s{sB}", f"s_mul_i32 s{sB}, s{sB}, {RW * 3584}", f"s_sub_u32 s{sB}, s{sB}, {T0 * BLK[1]}",
               f"v_lshrrev_b32 v{u+1}, 2, v{u}", f"v_mul_u32_u24 v{u+1}, 3584, v{u+1}", f"v_and_b32 v{u+2}, 3, v{u}", f"v_mul_u32_u24 v{u+2}, 72, v{u+2}",
               f"v_add3_u32 v{vTa+1}, v{u+1}, v{u+2}, s{sB}"] + oob(vTa + 1, 4 * RW)
        ta += [f"s_lshl2_add_u32 s{sB}, s2, s{sW}", f"s_mul_i32 s{sB}, s{sB}, {LD * 128}", f"s_sub_u32 s{sB}, s{sB}, {T0 * BLK[2]}",
               f"v_lshl_add_u32 v{vTa+2}, v{u}, 7, s{sB}"] + oob(vTa + 2, LD)
        ta += [f"s_mul_i32 s{sA}, s{sHead}, 224", f"s_cmp_lt_u32 s{sW}, 2\ns_cselect_b32 s{sWm}, s{KA+12}, s{KA+14}\ns_cselect_b32 s{sWm+1}, s{KA+13}, s{KA+15}",
               f"s_add_u32 s{sWm}, s{sWm}, s{sA}\ns_addc_u32 s{sWm+1}, s{sWm+1}, 0", f"s_sub_u32 s{sWm+2}, {448 * 3584}, s{sA}",
               f"s_mov_b32 s{sC}, s{KA+16}", f"s_mov_b32 s{sC+1}, s{KA+17}", f"s_mov_b32 s{sC+2}, {1792 * 896}"]
        for k, x in enumerate(ta): fixed[N0(9) + 12 + k].append(Item(x))
        for sg in range(12, 64, 4):
            for k, r in enumerate((sWo, sWm, sC)):
                if str(k) not in opt.get('tsel', '012'): continue
                fixed[G * sg + (2, 30, 66)[k]].append(Item(f"buffer_load_dword v{vTd}, v{vTa + k}, {sr(r,4)}, 0 offen", vm_tag='tch', cost=0))
                fixed[G * sg + (3, 31, 67)[k]].append(Item(f"v_add_u32 v{vTa + k}, {BLK[k]}, v{vTa + k}", cost=0))

    vCT = 252; NCL = 5
    KVD = opt.get('kvd', 0)
    if KVD:
        vKp = 251; u = 248; NW = 128 >> MAP; LK = 512 // NW
        ta = [f"v_and_b32 v{u}, 63, v0", f"s_and_b32 s{sA}, s{sQb}, {(32 >> MAP) - 1}", f"s_lshl2_add_u32 s{sB}, s{sA}, s{sW}", f"s_mul_i32 s{sB}, s{sB}, {LK * 128}",
              f"s_add_u32 s{sB}, s{sB}, {4 * 32768 + KVD * 65536}", f"v_lshl_add_u32 v{vKp}, v{u}, 7, s{sB}",
              f"v_sub_u32 v{u+1}, {LK - 1}, v{u}", f"v_and_b32 v{u+1}, {OOB}, v{u+1}", f"v_add_u32 v{vKp}, v{vKp}, v{u+1}"]
        for k, x in enumerate(ta): fixed[N0(10) + 12 + k].append(Item(x))
        for sg in range(12, 64, 4):
            fixed[G * sg + 16].append(Item(f"buffer_load_dword v{vCT+2}, v{vKp}, {sr(sK,4)}, 0 offen", vm_tag='tch', cost=0))
            fixed[G * sg + 51].append(Item(f"buffer_load_dword v{vCT+2}, v{vKp}, {sr(sV,4)}, 0 offen", vm_tag='tch', cost=0))
            fixed[G * sg + 52].append(Item(f"v_add_u32 v{vKp}, 65536, v{vKp}", cost=0))
    if opt.get('ct', 1) >= 2:
        for sg in range(12, 64, 4): fixed[G * sg + 44].append(Item(f"global_load_dword v{vCT+2}, v[{vCT}:{vCT+1}], off", vm_tag='tch', cost=0))
    for t in range(32):
        sdone = N0(jK(t)) + G - 1
        pv0 = N0(jV(t))
        if t == 0:
            its = max_items(0, [0], vTM, True) + [Item(x, cost=(2 if 'nop' in x else 1)) for x in xlane_multi("v_max_f32", [vTM, vTM + 1], [vTM + 2, vTM + 3])]
            its += [Item(f"v_sub_f32 v{vNEG + 4 * qh + q}, 0, v{vTM + qh}") for qh in range(2) for q in range(4)]
            m0 = last_write[(7, 0, 1)] + HZ
            sdone = min(m0 + opt.get('mw', 14), sdone - 3)
            spread(its, m0, sdone)
        its = sm_items(t % 2, sub=(t == 0))
        its.append(Item(f"v_max_f32 v{vTM}, v{vPS}, v{vPS + 1}"))
        its.append(Item(f"v_cmp_nge_f32 vcc, s{sThr}, v{vTM}"))
        spread(its, sdone + 2, pv0 - 3)
        post[pv0 - 1].append(Item(f"s_cbranch_vccnz @RARE{t % 2}@\n@BACK@:"))
        valu[pv0] += [Item(f"v_add_f32 v{vL + qh}, v{vL + qh}, v{vPS + qh}") for qh in range(2)]

    pv = N0(70)
    its = []
    for qh in range(2):
        its += xlane_reduce("v_add_f32", vL + qh, vTM) + [Item(f"v_rcp_f32 v{vRL + qh}, v{vL + qh}", cost=2)]
    spread(its, pv + 1, pv + 10)
    for ks in range(8):
        for qh in range(2):
            tb = vOT + 8 * qh
            its = [f"v_accvgpr_read_b32 v{tb + 4 * u + e}, a{aO + 8 * (2 * ks + u) + 4 * qh + e}" for u in range(2) for e in range(4)]
            its += [f"v_cvt_pk_bf16_f32 v{vOB + 8 * ks + 4 * qh + q}, v{tb + 2 * q}, v{tb + 2 * q + 1}" for q in range(4)]
            lo = pv + 12 + (2 * ks + qh) * 6; hi = lo + 5
            assert lo >= last_write[(70, 2 * ks + 1, 1)] + HZ and hi <= first_read[(71, ks, 0)] - 2, (ks, lo, hi)
            spread(its, lo, hi)
    for c in range(7):
        A = vOA[c % 2]; ST = vST[c % 2]
        k = 0
        for a in range(2):
            for qh in range(2):
                its = []
                if a == 0 and qh == 0: its.append(Item(f"s_add_u32 s{sXo}, s{sPart}, {c * P_C}"))
                src = [A + 8 * (2 * a + u) + 4 * qh + e for u in range(2) for e in range(4)]
                st = ST + 8 * a + 4 * qh
                its += [Item(f"v_mul_f32 v{x}, v{vRL + qh}, v{x}") for x in src]
                its += [Item(f"v_cvt_pk_bf16_f32 v{st + q}, v{src[2 * q]}, v{src[2 * q + 1]}") for q in range(4)]
                its.append(Item(f"buffer_store_dwordx4 {vr(st, 4)}, v{vL16 + qh}, {sr(sWS,4)}, s{sXo} offen" + (" offset:1024" if a else "") + opt.get('st_mod', SC), vm_tag=('st', c)))
                lw = last_write[(71 + c, 2 * a + 1, qh)]
                if c == 0: lo = N0(72) + HZ + 8 * k; hi = lo + 7
                else: lo = last_write[(71 + c, 2 * a + 1, 0)] + HZ + 14 * qh + (10 if c == 1 and a == 0 else 0); hi = lo + 13 - (5 if c == 1 and a == 0 else 0)
                assert lo >= lw + HZ
                if hi >= NG:
                    valu[NG].append(Item("s_nop 7")); valu[NG] += its
                else:
                    spread(its, lo, hi)
                k += 1

    E = Emitter()
    P = E.raw
    def PL(l):
        for x in l: E.raw(x)
    def poll(name, load, cmp_, dst):
        P(f"""s_mov_b32 s{sE}, {POLLMAX}
{name}_L:
{load}
s_waitcnt vmcnt(0)
{cmp_}
s_sub_u32 s{sE}, s{sE}, 1
s_cbranch_scc1 {name}_D
s_cmp_eq_u64 vcc, -1
s_cbranch_scc1 {name}_D
s_sleep 1
s_branch {name}_L
{name}_D:""")
    P("s_cmp_ge_u32 s2, 256\ns_cbranch_scc1 K_END")
    PL(stamp_lines())
    pst = lambda: PL(stamp_lines()) if opt.get('pst') else None
    W = vL; L = vL + 1; t0 = 96; t1 = 97; t2 = 98; t3 = 99; t4 = 100
    vXa = 104; vXR = 108; S1 = 112; S2 = 114; TT = 116; vPw = 120; vPs = 121; vOld = 122; vGo = 123
    pW = 32; pS = 64; pA = 80; pT = 88; pC = 124
    vGr = 88; vTg = 92; vGa = 93; vTa_ = 94; vMw = 95
    NA = opt.get('na', 2)
    code_touch = f"""s_getpc_b64 s[{sWS}:{sWS+1}]
K_PC:
s_lshr_b32 s{sA}, s2, 3
v_min_u32 v{vCT}, {NCL - 1}, v{L}
s_lshl2_add_u32 s{sA}, s{sA}, s{sW}
v_lshlrev_b32 v{vCT}, 14, v{vCT}
v_lshl_add_u32 v{vCT}, s{sA}, 7, v{vCT}
v_min_u32 v{vCT}, K_STUB1-K_PC, v{vCT}
v_mov_b32 v{vCT+1}, s{sWS+1}
v_add_co_u32 v{vCT}, vcc, s{sWS}, v{vCT}
s_nop 1
v_addc_co_u32 v{vCT+1}, vcc, 0, v{vCT+1}, vcc
global_load_dword v{vCT+2}, v[{vCT}:{vCT+1}], off
""" if opt.get('ct', 1) else ""
    P(f"""s_load_dwordx8 s[{KA+16}:{KA+23}], s[0:1], 64
s_load_dwordx16 s[{KA}:{KA+15}], s[0:1], 0
s_load_dwordx4 s[{KA+24}:{KA+27}], s[0:1], 96
v_lshrrev_b32 v{W}, 6, v0
v_and_b32 v{L}, 63, v0
v_readfirstlane_b32 s{sW}, v{W}
{code_touch}s_bfe_u32 s{sHead}, s2, {(MAP - 1) | ((4 - MAP) << 16)}
s_bfe_u32 s{sA}, s2, {3 | (MAP << 16)}
s_lshl_b32 s{sHead}, s{sHead}, {MAP}
s_lshr_b32 s{sQb}, s2, {3 + MAP}
s_add_u32 s{sHead}, s{sHead}, s{sA}
s_and_b32 s{sA}, s2, {(1 << (MAP - 1)) - 1}
s_lshl_b32 s{sA}, s{sA}, {5 - MAP}
s_add_u32 s{sQb}, s{sQb}, s{sA}
s_lshl2_add_u32 s{sB}, s{sHead}, s{sQb}
s_mul_i32 s{sA}, s{sB}, 37
s_lshr_b32 s{sA}, s{sA}, 8
s_mul_i32 s{sA}, s{sA}, 7
s_sub_u32 s{sB}, s{sB}, s{sA}
s_mul_i32 s{sRot[0]}, s{sB}, {128 * opt.get('rot', 1)}
v_lshrrev_b32 v{t0}, 2, v0
v_and_b32 v{t1}, 3, v0
v_mul_u32_u24 v{vPw}, {8 * 5376}, v{t0}
v_lshl_add_u32 v{vPw}, v{t1}, 4, v{vPw}
v_lshlrev_b32 v{t3}, 4, v{t0}
v_lshrrev_b32 v{t0}, 3, v{L}
v_mul_u32_u24 v{vXa}, 896, v{t0}
v_lshrrev_b32 v{t0}, 4, v{L}
v_xor_b32 v{t0}, v{t0}, v{L}
v_and_b32 v{t0}, 7, v{t0}
v_lshl_add_u32 v{vXa}, v{t0}, 4, v{vXa}
v_xor_b32 v{vXa+1}, 64, v{vXa}
v_add_u32 v{vXa+1}, {7168 - 1024}, v{vXa+1}
v_add_u32 v{vXa+2}, {2 * (7168 - 1024)}, v{vXa}
v_add_u32 v{vXa+3}, {2 * (7168 - 1024)}, v{vXa+1}
v_and_b32 v{t2}, 15, v{L}
v_lshlrev_b32 v{t2}, 3, v{t2}
v_lshrrev_b32 v{t0}, 4, v{L}
v_lshl_add_u32 v{vGo}, v{t0}, 12, v{t2}
s_lshl_b32 s{sW8}, s{sW}, 13
s_lshl2_add_u32 s{sA}, s{sQb}, s{sW}
s_mul_i32 s{sXo}, s{sA}, {32 * 896}""")
    for c in range(1, 7): P(f"s_add_u32 s{sRot[c]}, s{sRot[c-1]}, 128\ns_cmp_eq_u32 s{sRot[c]}, 896\ns_cselect_b32 s{sRot[c]}, 0, s{sRot[c]}")
    def w_loads():
        P(f"s_lshl_b32 s{sD}, s2, 6")
        for i in range(8):
            P(f"buffer_load_dwordx4 {vr(pW + 4 * i, 4)}, v{vPw}, {sr(sWm,4)}, s{sD} offen")
            if i < 7: P(f"s_add_u32 s{sD}, s{sD}, 5376")
    P(f"""s_lshl_b32 s{sE}, s2, 7
s_cmp_ge_u32 s2, 84
s_waitcnt lgkmcnt(0)
{srd(sX, KA + 0, None, 2048 * 896)}
{srd(sC, KA + 18, None, 896)}
{srd(sWm, KA + 20, None, 448 * 5376)}
s_cbranch_scc1 PRO_A
buffer_load_dwordx4 {vr(pC, 4)}, v{t3}, {sr(sC,4)}, 0 offen
s_cmp_ge_u32 s2, 28
s_cbranch_scc1 PRO_A""")
    WSD = srd(sWS, KA + 26, opt.get('wsoff'), WS_SIZE - opt.get('wsoff', 0))
    P(f"{WSD}\ns_add_u32 s{sE}, s{sE}, {WS_GR}\nbuffer_load_dword v{vOld}, v{vGo}, {sr(sWS,4)}, s{sE} offen offset:4{SC}")
    w_loads()
    P("PRO_A:")
    XB = [65536, 65536 + 4096, 32768, 32768 + 4096, 98304, 98304 + 4096, 131072 + 4096]
    def x_dma(c):
        P(f"s_add_u32 m0, s{sW8}, {XB[c]}\ns_add_u32 s{sTmp}, s{sXo}, s{sRot[c]}")
        for rb in range(4):
            E.item(Item(f"buffer_load_dwordx4 v{vXa + rb}, {sr(sX,4)}, s{sTmp} offen" + (f" offset:{1024 * rb}" if rb else "") + " lds", vm_tag=('x', c)))
    for c in range(NA): x_dma(c)
    pst()
    P(f"{WSD}\n{srd(sDbg, KA + 24, None, 256)}")
    P(f"""s_lshl_b32 s{sD}, s{sHead}, 9
{srd(sWq, KA + 6, f's{sD}', f's_sub_u32 s{sWq+2}, {448 * 8192}, s{sD}')}
s_mov_b32 s{sKo}, 0
s_mov_b32 s{sVo}, 0
s_mov_b32 s{sThr}, {hex((127 + THR_LOG2) << 23)}
s_lshl2_add_u32 s{sA}, s{sQb}, s{sW}
s_mul_i32 s{sA}, s{sA}, {2 * P_Q}
s_mul_i32 s{sB}, s{sHead}, {P_H}
s_add_u32 s{sPart}, s{sA}, s{sB}
s_add_u32 s{sPart}, s{sPart}, {WS_PART}
s_lshl_b32 s{sD}, s{sHead}, 20
{srd(sK, KA + 2, f's{sD}', 0x100000)}
{srd(sV, KA + 4, f's{sD}', 0x100000)}
s_mul_i32 s{sD}, s{sHead}, {256 * 896}
{srd(sWo, KA + 8, f's{sD}', 256 * 896)}
s_and_b32 s{sA}, s{sW}, 1
s_mul_i32 s{sD}, s{sA}, {32 * 3584}
s_mul_i32 s{sB}, s{sHead}, 224
s_add_u32 s{sD}, s{sD}, s{sB}
s_mul_i32 s{sGUl}, s{sA}, 7168
s_cmp_lt_u32 s{sW}, 2
s_cselect_b32 s{sGU}, s{KA+12}, s{KA+14}
s_cselect_b32 s{sGU+1}, s{KA+13}, s{KA+15}
s_cselect_b32 s{sA}, 0, 14464
s_add_u32 s{sGUl}, s{sGUl}, s{sA}
{srd(sGU, sGU, f's{sD}', f's_sub_u32 s{sGU+2}, {448 * 3584}, s{sD}')}
s_lshl_b32 s{sF}, s{sQb}, 7
s_lshl2_add_u32 s{sF}, s{sHead}, s{sF}
s_add_u32 s{sF}, s{sF}, {WS_FLAG}
s_lshl1_add_u32 s{sA}, s{sRot[0]}, {LDS_MOD}
v_lshrrev_b32 v{t0}, 5, v{L}
v_and_b32 v{t1}, 31, v{L}
v_lshl_add_u32 v{vMod}, v{t0}, 5, s{sA}
v_lshl_add_u32 v{t2}, v{W}, 4, v{t0}
v_lshlrev_b32 v{t2}, 13, v{t2}
v_lshlrev_b32 v{t4}, 2, v{t0}
v_xor_b32 v{t4}, v{t4}, v{t1}
v_lshl_add_u32 v{vDW}, v{t4}, 4, v{t2}
v_xor_b32 v{vDW+1}, 128, v{vDW}
v_and_b32 v{t2}, 15, v{L}
v_lshrrev_b32 v{t3}, 4, v{L}
v_xor_b32 v{t3}, v{t3}, v{t2}
v_lshlrev_b32 v{t2}, 9, v{t2}
v_lshl_add_u32 v{t3}, v{t3}, 4, v{t2}
v_add_u32 v{t3}, {SLOT[3]}, v{t3}""")
    for q in range(4): P(f"v_xor_b32 v{vK + q}, {64 * q}, v{t3}")
    P(f"""v_lshrrev_b32 v{t2}, 2, v{L}
v_lshlrev_b32 v{t3}, 9, v{t2}
v_and_b32 v{t2}, 7, v{t2}
v_lshl_add_u32 v{t3}, v{t2}, 5, v{t3}
v_and_b32 v{t2}, 3, v{L}
v_lshl_add_u32 v{t3}, v{t2}, 3, v{t3}""")
    for q in range(8): P(f"v_xor_b32 v{vV + q}, {0x10000 + 32 * q}, v{t3}")
    P(f"""v_bfe_u32 v{t2}, v{L}, 2, 2
v_mul_u32_u24 v{t3}, {512 + 64}, v{t2}
v_lshl_add_u32 v{t3}, v{t0}, 12, v{t3}
v_and_b32 v{t2}, 1, v{L}
v_lshl_add_u32 v{t3}, v{t2}, 5, v{t3}
v_and_b32 v{t2}, 16, v{L}
v_add_u32 v{t3}, v{t3}, v{t2}
v_and_b32 v{t2}, 2, v{L}
v_lshl_add_u32 v{t3}, v{t2}, 2, v{t3}""")
    for q in range(8): P(f"v_xor_b32 v{vWr + q}, {(q >> 2) * 0x10000 + 64 * (q & 3)}, v{t3}")
    P(f"""v_lshlrev_b32 v{t2}, 13, v{W}
v_lshl_add_u32 v{t2}, v{t0}, 9, v{t2}
v_xor_b32 v{t3}, v{t1}, v{t0}
v_lshl_add_u32 v{t3}, v{t3}, 4, v{t2}""")
    for q in range(8): P(f"v_xor_b32 v{vDK + q}, {(2 * q) * 16 + (q // 4) * 4096}, v{t3}")
    P(f"""v_lshlrev_b32 v{t4}, 1, v{t0}
v_xor_b32 v{t4}, v{t4}, v{t1}
v_lshl_add_u32 v{t3}, v{t4}, 4, v{t2}""")
    for q in range(8): P(f"v_xor_b32 v{vDV + q}, {(q % 4) * 64 + (q // 4) * 4096}, v{t3}")
    P(f"""v_bfe_u32 v{t2}, v{L}, 1, 3
v_xor_b32 v{t2}, v{t2}, v{t0}
v_lshlrev_b32 v{t3}, 7, v{t1}
v_lshl_add_u32 v{t3}, v{t2}, 4, v{t3}
s_add_u32 s{sA}, s{sW8}, 32768
v_add_u32 v{vXR}, s{sA}, v{t3}""")
    for q in range(1, 4): P(f"v_xor_b32 v{vXR + q}, {32 * q}, v{vXR}")
    PL([f"v_mov_b32 v{S1 + k}, 0" for k in range(4)])
    pst()
    P("s_cmp_lt_u32 s2, 84\ns_cbranch_scc1 PROD\nPRO_B:")
    pst()
    keep = E.out; E.out = ["PROD:"]
    NX = 4 * NA + 1
    P(f"""s_mov_b32 s{sD}, {f2u(-math.log2(math.e))}
s_mov_b32 s{sA}, 0xffff0000
v_and_b32 v{t2}, 3, v{L}
v_lshrrev_b32 v{t3}, 4, v{L}
v_lshl_add_u32 v{t2}, v{t2}, 2, v{t3}
v_lshlrev_b32 v{t3}, 7, v{W}
v_lshl_add_u32 v{vPs}, v{t2}, 3, v{t3}
v_add_u32 v{vPs}, {LDS_SCR}, v{vPs}""")
    PL([f"v_mov_b32 v{pA + e}, 0" for e in range(8)])
    P(f"s_cmp_lt_u32 s2, 28\ns_cbranch_scc1 PROD1\ns_waitcnt vmcnt({NX - 1})\nPROD1:\ns_waitcnt vmcnt({NX + 8})")
    PL([(f"v_and_b32 v{pS + i}, s{sA}, v{pC + i // 2}" if i % 2 else f"v_lshlrev_b32 v{pS + i}, 16, v{pC + i // 2}") for i in range(8)])
    PL([f"v_mul_f32 v{pT + i}, s{sD}, v{pS + i}" for i in range(8)])
    PL([f"v_exp_f32 v{pT + i}, v{pT + i}" for i in range(8)])
    PL([f"v_add_f32 v{pT + i}, 1.0, v{pT + i}" for i in range(8)])
    PL([f"v_rcp_f32 v{pT + i}, v{pT + i}" for i in range(8)])
    PL([f"v_mul_f32 v{pT + i}, v{pS + i}, v{pT + i}" for i in range(8)])
    PL([f"v_cvt_pk_bf16_f32 v{pS + i}, v{pT + i}, 0" for i in range(8)])
    PL([f"v_cvt_pk_bf16_f32 v{pS + 8 + i}, 0, v{pT + i}" for i in range(8)])
    P("s_cbranch_scc0 PRO_B")
    P(f"s_waitcnt vmcnt({NX + 7})\nv_lshlrev_b32 v{vOld}, v{vOld}, 1\nv_and_b32 v{t2}, 0xcf, v0\nv_lshrrev_b32 v{t3}, 4, v0")
    P("\n".join(f"v_or_b32_dpp v{vOld}, v{vOld}, v{vOld} row_ror:{sh} row_mask:0xf bank_mask:0xf\ns_nop 1" for sh in (1, 2, 4, 8)))
    P(f"""v_not_b32 v{vOld}, v{vOld}
v_lshl_add_u32 v{t2}, v{t2}, 20, v{t3}
v_ffbl_b32 v{vOld}, v{vOld}
s_lshl_b32 s{sD}, s2, 2
v_add_u32 v{vOld}, 32, v{vOld}
buffer_store_byte v{vOld}, v{t2}, {sr(sDbg,4)}, s{sD} offen{SC}""")
    def p_dots(after):
        for i in range(8):
            P(f"s_waitcnt vmcnt({after + 7 - i})")
            PL([f"v_dot2c_f32_bf16 v{pA + e}, v{pW + 4 * i + e // 2}, v{pS + 8 * (e % 2) + i}" for e in range(8)])
        P("s_nop 0")
        PL([f"v_permlane32_swap_b32 v{pA + e}, v{pA + 4 + e}" for e in range(4)])
        PL([f"v_add_f32 v{pA + e}, v{pA + e}, v{pA + 4 + e}" for e in range(4)])
        P("s_nop 0")
        PL([f"v_permlane16_swap_b32 v{pA + e}, v{pA + 2 + e}" for e in range(2)])
        PL([f"v_add_f32 v{pA + e}, v{pA + e}, v{pA + 2 + e}" for e in range(2)])
        for sh in (4, 8):
            P("s_nop 0")
            PL([f"v_add_f32_dpp v{pA + e}, v{pA + e}, v{pA + e} row_ror:{sh} row_mask:0xf bank_mask:0xf" for e in range(2)])
        P(f"ds_write_b64 v{vPs}, {vr(pA, 2)}")
    def p_fin(f, mid):
        P(f"""v_and_b32 v{f+8}, 15, v0
v_lshlrev_b32 v{f+8}, 3, v{f+8}
v_add_u32 v{f+9}, {LDS_SCR}, v{f+8}""")
        PL([f"ds_read_b64 {vr(f + 2 * k, 2)}, v{f+9} offset:{128 * k}" for k in range(4)])
        P(f"""s_mul_i32 s{sB}, s2, 4682
s_lshr_b32 s{sB}, s{sB}, 16
s_cmp_eq_u32 s{sB}, 1
s_cselect_b32 s{sA}, 1.0, 0
s_cmp_eq_u32 s{sB}, 4
s_cselect_b32 s{sA}, 1.0, s{sA}
v_lshrrev_b32 v{f+9}, 4, v0
v_lshl_add_u32 v{f+9}, v{f+9}, 29, v{f+8}
{mid}
s_waitcnt lgkmcnt(0)
v_add_f32 v{f}, v{f}, v{f+2}
v_add_f32 v{f+1}, v{f+1}, v{f+3}
v_add_f32 v{f+4}, v{f+4}, v{f+6}
v_add_f32 v{f+5}, v{f+5}, v{f+7}
v_add_f32 v{f}, v{f}, v{f+4}
v_add_f32 v{f+1}, v{f+1}, v{f+5}
v_cvt_pk_bf16_f32 v{f}, 0, v{f}
v_cvt_pk_bf16_f32 v{f+1}, 0, v{f+1}
v_add_f32 v{f}, s{sA}, v{f}
v_add_f32 v{f+1}, s{sA}, v{f+1}""")
    p_dots(NX)
    P(f"""s_cmp_lg_u32 s{sW}, 0
s_waitcnt lgkmcnt(0)
s_barrier
s_cbranch_scc1 PRO_B""")
    f = pW
    p_fin(f, f"v_mov_b32 v{f+11}, v{vOld}")
    P(f"""v_cvt_pk_bf16_f32 v{f+10}, v{f}, v{f+1}
buffer_store_dwordx2 {vr(f + 10, 2)}, v{vGo}, {sr(sWS,4)}, s{sE} offen{SC}
s_branch PRO_B""")
    ool = E.out; E.out = keep
    def w_list(j): return [(pre, it) for pre, it, aft in dma_items(j)]
    def w_one(x):
        for y in x[0]: P(y)
        E.item(x[1])
    P(f"s_mov_b32 s{sA}, 0x3f803f80")
    def x_read(c):
        if c == 4: PL([f"v_add_u32 v{vXR + q}, 0x10000, v{vXR + q}" for q in range(4)])
        for ks in range(4):
            E.item(Item(f"ds_read_b128 {vr(vXN + 16 * c + 4 * ks, 4)}, v{vXR + ks} offset:{(XB[c] - 32768) % 65536}", lds_tag=('xr', c, ks), need_vm=(('x', c),)))
    def x_stat(c):
        for ks in range(4):
            E.wait_lds((('xr', c, ks),))
            for d in range(4):
                x = vXN + 16 * c + 4 * ks + d
                P(f"v_dot2c_f32_bf16 v{S1 + (d & 1)}, s{sA}, v{x}\nv_dot2c_f32_bf16 v{S2 + (d & 1)}, v{x}, v{x}")
    def rot_w():
        for c in range(7): P(f"s_lshl_b32 s{sRot[c]}, s{sRot[c]}, 12")
    PLD = [f"buffer_load_dwordx4 {vr(vGr, 4)}, v{vGa}, {sr(sWS,4)}, 0 offen{SC}", f"buffer_load_ubyte v{vTg}, v{vTa_}, {sr(sDbg,4)}, 0 offen{SC}"]
    def poll_ld():
        P(f"""v_min_u32 v{vMw}, 55, v{L}
s_mul_i32 s{sB}, s{sW}, 56
v_add_u32 v{vGa}, s{sB}, v{vMw}
s_bfe_u32 s{sE}, s2, 0x20003
v_lshrrev_b32 v{vTa_}, 3, v{vGa}
v_lshlrev_b32 v{vGa}, 4, v{vGa}
v_lshl_add_u32 v{vTa_}, v{vTa_}, 2, s{sE}
s_cmp_lt_u32 s{sW}, 2
s_cselect_b32 s{sB}, 0, {LDS_A1 - 1792}
s_add_u32 s{sB}, s{sB}, {LDS_MOD}
s_lshl_b32 s{sE}, s{sE}, 12
v_add_u32 v{vMw}, s{sB}, v{vGa}
s_add_u32 s{sE}, s{sE}, {WS_GR}
v_add_u32 v{vGa}, s{sE}, v{vGa}""")
    def poll_1st():
        P(PLD[1].replace(SC, opt.get('tg_mod', '')) + "\n" + PLD[0])
    jobs = [lambda c=c: x_dma(c) for c in range(NA, 7)]
    jobs.append(lambda: (rot_w(), [w_one(x) for x in w_list(0)]))
    jobs += [lambda j=j: [w_one(x) for x in w_list(j)] for j in range(1, NPRE)]
    AH = opt.get('ah', 3)
    for _ in range(AH): jobs.pop(0)()
    for c in range(7):
        x_read(c)
        if c: x_stat(c - 1)
        if jobs: jobs.pop(0)()
    while jobs: jobs.pop(0)()
    P("s_sub_u32 m0, s2, 28\ns_cmp_ge_u32 m0, 56\ns_cbranch_scc1 PRO_D")
    w_loads()
    P("PRO_D:")
    poll_ld()
    x_stat(6)
    pst()
    P(f"""s_mov_b32 s{sB}, {f2u(1 / 448)}
s_mov_b32 s{sMsk}, 0xffff0000
s_nop 0
v_add_f32 v{S1}, v{S1}, v{S1+1}
v_add_f32 v{S2}, v{S2}, v{S2+1}
v_mov_b32 v{TT}, v{S1}
v_mov_b32 v{TT+1}, v{S2}
s_nop 0
v_permlane32_swap_b32 v{S1}, v{TT}
v_permlane32_swap_b32 v{S2}, v{TT+1}
v_add_f32 v{S1}, v{S1}, v{TT}
v_add_f32 v{S2}, v{S2}, v{TT+1}
v_mul_f32 v{S1}, s{sB}, v{S1}
v_mul_f32 v{S2}, s{sB}, v{S2}
v_fma_f32 v{S2}, -v{S1}, v{S1}, v{S2}
v_max_f32 v{S2}, 0, v{S2}
v_add_f32 v{S2}, {f2u(1e-5)}, v{S2}
v_rsq_f32 v{vRS}, v{S2}
v_mov_b32 v{vCT}, v{vPs}
v_mul_f32 v{vNM}, -v{S1}, v{vRS}""")
    PF = min(opt.get('pf', 18), PN)
    for k in range(4, 5 + PN):
        if k == 4 + PF: poll_1st()
        if k == 4 + PN: break
        T = tn(k)
        PL([x.text for x in n_items(k, T)] + [f"v_cvt_pk_bf16_f32 v{vXN + 4 * k + q}, v{T + 2 * q}, v{T + 2 * q + 1}" for q in range(4)])
    for k in range(4): PL([x.text for x in n_items(k)])
    pst()
    P("s_cmp_lt_u32 m0, 56\ns_cbranch_scc1 LATE\nPRO_E:")
    keep = E.out; E.out = ool + ["LATE:"]
    vPs = vCT
    p_dots(2)
    P("s_branch PRO_E\nLATE_F:")
    f = vHB + 16
    p_fin(f, f"s_lshl_b32 s{sE}, s2, 7")
    P(f"""v_cvt_pk_bf16_f32 v{f}, 0, v{f}
v_cvt_pk_bf16_f32 v{f+1}, 0, v{f+1}
buffer_store_dwordx2 {vr(f, 2)}, v{f+9}, {sr(sWS,4)}, s{sE} offen offset:512{SC}
s_branch LATE_FB""")
    ool = E.out; E.out = keep
    PL(stamp_lines())
    P(f"""s_mov_b32 s{sE}, {POLLMAX}
s_mov_b32 s{sB}, {f2u(math.log2(math.e) / 16)}
POLL0_L:
s_waitcnt vmcnt(0)
v_cmp_eq_u32 vcc, v{vGr+1}, v{vTg}
v_cmp_eq_u32 s[96:97], v{vGr+3}, v{vTg}
v_cmp_ne_u32 s[98:99], 0, v{vTg}
v_lshlrev_b32 v{pA}, 16, v{vGr}
s_and_b64 vcc, vcc, s[96:97]
s_and_b64 vcc, vcc, s[98:99]
s_cmp_eq_u64 vcc, -1
s_cbranch_scc1 POLL0_D
s_sub_u32 s{sE}, s{sE}, 1
s_cbranch_scc1 POLL0_D
s_sleep {opt.get('psl', 6)}
{PLD[0]}
{PLD[1]}
s_branch POLL0_L
POLL0_D:
v_and_b32 v{pA+1}, s{sMsk}, v{vGr}
v_lshlrev_b32 v{pA+2}, 16, v{vGr+2}
v_and_b32 v{pA+3}, s{sMsk}, v{vGr+2}
v_mul_f32 v{pA}, s{sB}, v{pA}
v_mul_f32 v{pA+1}, s{sB}, v{pA+1}
v_mul_f32 v{pA+2}, s{sB}, v{pA+2}
v_mul_f32 v{pA+3}, s{sB}, v{pA+3}
s_cmp_lt_u32 m0, 56
ds_write_b128 v{vMw}, {vr(pA, 4)}
ds_write_b128 v{vMw}, {vr(pA, 4)} offset:1792
s_cselect_b32 s{sA}, s{sW}, 1
s_cmp_eq_u32 s{sA}, 0
s_waitcnt lgkmcnt(0)""")
    E.vm_done = len(E.vm); E.lds_done = len(E.lds)
    head = E.out; E.out = []

    if opt.get('mo', 1):
        for n in range(SH, NG - 2):
            if mf[n] is None or mf[n + 1] is not None: continue
            fixed[n] += fixed[n + 1]; fixed[n + 1] = []
            v = valu[n] + valu[n + 1]; valu[n + 1] = []
            for q, x in enumerate(v):
                if x.text.startswith('ds_read'):
                    assert not any(Ins(x.text).ws & Ins(y.text).rs for y in v[:q]), x.text
                    fixed[n].append(x)
            valu[n] = [x for x in v if not x.text.startswith('ds_read')]
    def bar(E, it):
        j = it[1]
        if j > 0: E.wait_lds((('f', j - 1, 31),))
        E.wait_vm((('tile', j),))
    segs = S_.emit(E, G, MINAGE, bar)

    import tail
    tl = tail.gen_tail(E, opt, poll, stamp_lines, gu_dma, put_dma, GU_SLOT)

    clean = lambda l: [x.replace('@RARE0@', 'R').replace('@RARE1@', 'R').replace('@BACK@', 'B') for x in l]
    best = (0, 0)
    for a in range(len(segs)):
        b = a
        while b + 4 < len(segs) and segs[b] == segs[b + 4]: b += 1
        ntrip = (b + 4 - a) // 4
        if ntrip > best[1]: best = (a, ntrip)
    a, ntrip = best
    out = list(head)
    stubs = []
    cnt = [0]
    def put(seg, k=None):
        if stamps is not None and k in stamps: out.extend(stamp_lines())
        for x in seg:
            if '@RARE' in x:
                cnt[0] += 1
                par = x[x.index('@RARE') + 5]
                stubs.extend([f"K_STUB{cnt[0]}:", f"s_call_b64 {sr(sRet,2)}, K_RARE{par}", f"s_branch K_BACK{cnt[0]}"])
                x = x.replace(f'@RARE{par}@', f"K_STUB{cnt[0]}")
            x = x.replace('@BACK@', f"K_BACK{cnt[0]}")
            out.append(x)
    for k, s in enumerate(segs[:a]): put(s, k)
    out.extend(stamp_lines())
    out.append(f"s_mov_b32 s{sCnt}, {ntrip - 1}")
    if opt.get('align'): out.append(f".p2align {opt['align']}")
    out.append("K_LOOP:")
    abl = [_re.compile(x) for x in opt.get('ablate', [])]
    for s in segs[a:a + 4]: put([x for x in s if not any(r.search(x) for r in abl)])
    out += [f"s_sub_u32 s{sCnt}, s{sCnt}, 1", "s_cbranch_scc0 K_LOOP"]
    rest = segs[a + 4 * ntrip:]
    if stamps is not None: out.append(f"v_mov_b32 v{vSTMP}, v255"); streg[0] = vSTMP
    out.extend(stamp_lines())
    abl2 = [_re.compile(x) for x in opt.get('ablate2', [])]
    for k, s in enumerate(rest): put([x for x in s if not any(r.search(x) for r in abl2)], k + len(segs) - len(rest))
    tl = [y for x in tl for y in (stamp_lines() if x == '@STAMP@' else [x])]
    out += tl
    errs = check_hazards(clean(head + [x for s in segs for x in s] + tl), 'main')
    out.append("K_FIN:")
    if stamps is not None:
        out += ["s_waitcnt vmcnt(0)"] + stamp_lines()
        out += [f"s_lshl_b32 s{sA}, s2, 2", f"s_add_u32 s{sA}, s{sA}, s{sW}", f"s_lshl_b32 s{sA}, s{sA}, 8", f"s_add_u32 s{sA}, s{sA}, {WS_END}",
                "v_and_b32 v1, 63, v0", "v_lshlrev_b32 v1, 2, v1", f"buffer_store_dword v{vSTMP}, v1, {sr(sWS,4)}, s{sA} offen"]
    if opt.get('probe'):
        k0, k1 = opt['probe']
        out += [f"v_readlane_b32 s96, v{vSTMP}, 1", f"v_readlane_b32 s97, v{vSTMP}, {2 * k0 + 1}", f"v_readlane_b32 s95, v{vSTMP}, {2 * k1 + 1}", "s_nop 4",
                "s_sub_u32 s95, s95, s97", "s_min_u32 s95, s95, 15000", "s_add_u32 s95, s95, 15000", "PRB:", "s_memrealtime s[98:99]", "s_waitcnt lgkmcnt(0)", "s_sub_u32 s98, s98, s96",
                "s_cmp_lt_u32 s98, s95", "s_cbranch_scc1 PRB"]
    out += ["K_END:", "s_endpgm"]
    errs += check_hazards(ool, 'ool')
    out += ool
    out += stubs
    E.out = ["CHK_SLOW:"]
    poll("POLLC", CHKLD, f"v_cmp_le_u32 vcc, v{o0+1}, v{o0+2}", o0 + 2)
    out += E.out + ["s_branch CHK_BACK"]; E.out = []
    for b in range(2):
        r = [f"K_RARE{b}:", "s_nop 15"]
        r += [x.text for x in max_items(b, [0, 1, 2, 3], vTM, True)]
        for qh in range(2):
            r += [x.text for x in xlane_reduce("v_max_f32", vTM + qh, vTM + 2)]
            r += [f"v_max_f32 v{vTM + qh}, 0, v{vTM + qh}"]
        for qh in range(2):
            r += [f"v_sub_f32 v{vTM + 2 + qh}, 0, v{vTM + qh}", f"v_exp_f32 v{vTM + 2 + qh}, v{vTM + 2 + qh}"]
        for qh in range(2):
            regs = [Sr(bb, kb, qh) + e for bb in range(2) for kb in range(4) for e in range(4)] + [vNEG + 4 * qh + e for e in range(4)]
            r += [f"v_sub_f32 v{x}, v{x}, v{vTM + qh}" for x in regs]
            r += [f"v_mul_f32 v{vL + qh}, v{vL + qh}, v{vTM + 2 + qh}"]
        for q in range(0, 128, 8):
            r += [f"v_accvgpr_read_b32 v{vT + e}, a{aO + q + e}" for e in range(8)]
            r += [f"v_mul_f32 v{vT + e}, v{vT + e}, v{vTM + 2 + e // 4}" for e in range(8)]
            r += [f"v_accvgpr_write_b32 a{aO + q + e}, v{vT + e}" for e in range(8)]
        r += [x.text for x in sm_items(b)]
        r += ["s_nop 4", f"s_setpc_b64 {sr(sRet,2)}"]
        errs += check_hazards(r, f'rare{b}')
        out += r
    info = dict(loop_start=a, ntrip=ntrip, nseg=len(segs), nstamps=nst[0])
    return out, errs, info
```
